```python
import torch

def _softmax(x, axis=-1):
    return torch.softmax(x, dim=axis)
def _gelu(x):
    return torch.nn.functional.gelu(x, approximate="tanh")
def _silu(x):
    return torch.nn.functional.silu(x)
def _sigmoid(x):
    return torch.sigmoid(x)
def _layernorm(x, axis=-1, eps=1e-5):
    m = x.mean(dim=axis, keepdim=True)
    v = x.var(dim=axis, keepdim=True, unbiased=False)
    return (x - m) / torch.sqrt(v + eps)
def _scatter_add(tgt, idx, src, axis=0):
    return tgt.clone().index_add_(axis, idx, src)
def _segment_sum(src, seg, n):
    out = torch.zeros((n,) + src.shape[1:], dtype=src.dtype)
    return out.index_add_(0, seg, src)
def _pad(x, pw):
    flat = tuple(v for pair in reversed(pw) for v in pair)
    return torch.nn.functional.pad(x, flat)

kernel_name = 'interleave_layers__sliding_local_dilated__dense_activation_mish__prompt'

def setup_inputs():

    _w = (lambda a: (lambda t: t.to(torch.bfloat16) if t.is_floating_point() else t)(torch.as_tensor(a)))
    def _A_setup():
        B, S, D = 1, 2048, 512
        return {
            "x": _w((lambda *s: torch.randn(*s, dtype=torch.bfloat16) * 0.05)(B, S, D)),
            "wqkv": _w((lambda *s: torch.randn(*s, dtype=torch.bfloat16) * 0.05)(D, 3 * D)),
            "wo": _w((lambda *s: torch.randn(*s, dtype=torch.bfloat16) * 0.05)(D, D)),
        }
    _A_in = _A_setup()

    def _B_setup():
        B, S, D, F = 1, 2048, 512, 1376
        return {
            "x": _w((lambda *s: torch.randn(*s, dtype=torch.bfloat16) * 0.05)(B, S, D)),
            "w1": _w((lambda *s: torch.randn(*s, dtype=torch.bfloat16) * 0.8)(D, F) * (D ** -0.5)),
            "b1": _w((lambda *s: torch.randn(*s, dtype=torch.bfloat16) * 0.8)(F)),
            "w2": _w((lambda *s: torch.randn(*s, dtype=torch.bfloat16) * 0.8)(F, D) * (F ** -0.5)),
        }
    _B_in = _B_setup()

    return {
        "A_x": _A_in["x"],
        "A_wqkv": _A_in["wqkv"],
        "A_wo": _A_in["wo"],
        "B_x": _B_in["x"],
        "B_w1": _B_in["w1"],
        "B_b1": _B_in["b1"],
        "B_w2": _B_in["w2"],
    }

def reference(A_x, A_wqkv, A_wo, B_x, B_w1, B_b1, B_w2):
    def _A_ref(x, wqkv, wo):
        B, S, D = x.shape
        H = 32; Dh = D // H
        W, dil = 8, 2
        qkv = (lambda x, *d: x.permute(*d))((x @ wqkv).reshape(B, S, 3, H, Dh), 2, 0, 3, 1, 4)
        q, k, v = qkv[0], qkv[1], qkv[2]
        scale = Dh ** -0.5
        pos = torch.arange(S)
        off = torch.arange(W) * dil
        idx = pos[:, None] - off[None, :]
        mask = idx >= 0
        idx_c = torch.where(mask, idx, 0).reshape(-1)
        kg = k[:, :, idx_c, :].reshape(B, H, S, W, Dh)
        vg = v[:, :, idx_c, :].reshape(B, H, S, W, Dh)
        logits = torch.einsum("bhsd,bhswd->bhsw", q, kg) * scale
        logits = torch.where(mask[None, None, :, :], logits, -1e9)
        attn = _softmax(logits, axis=-1)
        o = torch.einsum("bhsw,bhswd->bhsd", attn, vg)
        return (lambda x, *d: x.permute(*d))(o, 0, 2, 1, 3).reshape(B, S, D) @ wo

    def _B_ref(x, w1, b1, w2):
        h = torch.einsum("bsd,df->bsf", x, w1) + b1
        sp = torch.log1p(torch.exp(-torch.abs(h))) + torch.where(h > 0, h, torch.zeros_like(h))
        act = h * torch.tanh(sp)
        return torch.einsum("bsf,fd->bsd", act, w2)

    x = A_x
    x = x + _A_ref(_layernorm(x, axis=-1), A_wqkv, A_wo)
    x = x + _B_ref(_layernorm(x, axis=-1), B_w1, B_b1, B_w2)
    x = x + _A_ref(_layernorm(x, axis=-1), A_wqkv, A_wo)
    x = x + _B_ref(_layernorm(x, axis=-1), B_w1, B_b1, B_w2)
    return x
```

```python
import re

TRANS = ("v_exp_f32", "v_log_f32", "v_rcp_f32", "v_rsq_f32", "v_sqrt_f32", "v_sin_f32", "v_cos_f32")

def regs_of(tok):
    tok = tok.strip()
    tok = tok.lstrip("-")
    m = re.fullmatch(r"abs\((.*)\)", tok)
    if m: tok = m.group(1)
    m = re.fullmatch(r"\|(.*)\|", tok)
    if m: tok = m.group(1)
    m = re.fullmatch(r"([vas])(\d+)", tok)
    if m: return {(m.group(1), int(m.group(2)))}
    m = re.fullmatch(r"([vas])\[(\d+):(\d+)\]", tok)
    if m: return {(m.group(1), i) for i in range(int(m.group(2)), int(m.group(3)) + 1)}
    if tok == "vcc": return {("s", "vcc")}
    if tok == "exec": return {("s", "exec")}
    if tok == "m0": return {("s", "m0")}
    return set()

class Ins:
    __slots__ = ("text", "op", "kind", "dst", "src", "srcC", "srcAB", "store_data", "ws")
    def __init__(self, text):
        self.text = text
        t = text.split(";")[0].strip()
        self.op = t.split()[0] if t else ""
        rest = t[len(self.op):].strip()
        ops = [o.strip() for o in rest.split(",")] if rest else []
        ops = [o.split()[0] if o and not o.startswith("hwreg") else o for o in ops]
        R = [regs_of(o) for o in ops]
        op = self.op
        self.dst = set(); self.src = set(); self.srcC = set(); self.srcAB = set(); self.store_data = set()
        self.ws = 1
        if t.endswith(":") or op.startswith("."):
            self.kind = "label"; self.ws = 0; return
        if op == "s_nop":
            self.kind = "nop"; self.ws = int(ops[0], 0) + 1; return
        if op.startswith("v_mfma"):
            self.kind = "mfma"; self.dst = R[0]; self.srcAB = R[1] | R[2]; self.srcC = R[3]; self.src = self.srcAB | self.srcC
        elif op.startswith("v_"):
            self.kind = "valu"
            if op.startswith("v_cmp"):
                self.dst = R[0]; self.src = set().union(*R[1:])
            elif op.startswith("v_permlane"):
                self.kind = "perm"; self.dst = R[0] | R[1]; self.src = R[0] | R[1]
            elif op.startswith("v_readfirstlane") or op.startswith("v_readlane"):
                self.kind = "rdlane"; self.dst = R[0]; self.src = set().union(*R[1:])
            else:
                self.dst = R[0]; self.src = set().union(*R[1:]) if len(R) > 1 else set()
                if op.startswith(("v_fmac", "v_dot2c", "v_writelane")): self.src |= R[0]
                if op.startswith("v_cndmask") and len(ops) == 3: self.src |= {("s", "vcc")}
                if op.startswith(TRANS): self.kind = "trans"
                if op.startswith("v_dot"): self.kind = "dot"; self.srcC = R[3] if len(R) > 3 else R[0]
                if "dpp" in op or "row_" in t or "quad_perm" in t: self.kind = "dpp"
        elif op.startswith("buffer_") or op.startswith("global_"):
            self.kind = "vmem"
            if " lds" in t:
                self.src = set().union(*R) | {("s", "m0")}; self.kind = "dma"
            elif "load" in op:
                self.dst = R[0]; self.src = set().union(*R[1:])
            elif op == "buffer_wbl2" or op == "buffer_inv":
                pass
            else:
                self.src = set().union(*R)
                if "x4" in op or "x3" in op: self.store_data = R[0]
        elif op.startswith("ds_"):
            self.kind = "ds"
            if "read" in op or "bpermute" in op or "swizzle" in op:
                self.dst = R[0]; self.src = set().union(*R[1:])
            else:
                self.src = set().union(*R)
        elif op.startswith("s_"):
            self.kind = "salu"
            if op.startswith(("s_cmp", "s_cbranch", "s_branch", "s_waitcnt", "s_barrier", "s_endpgm", "s_sleep", "s_setprio")):
                self.src = set().union(*R) if R else set()
            else:
                self.dst = R[0] if R else set(); self.src = set().union(*R[1:]) if len(R) > 1 else set()
        else:
            raise ValueError("unknown instr: " + text)

VALU_KINDS = ("valu", "trans", "perm", "rdlane", "dot", "dpp")

def need(p, c):
    n = 0
    pv = {r for r in p.dst if r[0] in "va"}
    ps = {r for r in p.dst if r[0] == "s"}
    if p.kind in VALU_KINDS:
        if c.kind == "mfma" and pv & c.src: n = max(n, 2)
        if c.kind in ("perm", "dpp") and pv & c.src: n = max(n, 2)
        if c.kind == "rdlane" and pv & c.src: n = max(n, 1)
        if p.kind == "trans" and c.kind in VALU_KINDS + ("mfma",) and pv & c.src: n = max(n, 1)
        if ps:
            if c.kind in VALU_KINDS and ps & c.src: n = max(n, 4 if c.kind == "rdlane" or c.op.startswith("v_writelane") else 2)
            if c.kind in ("vmem", "dma") and ps & c.src: n = max(n, 5)
            if c.kind == "salu" and ps & c.src: n = max(n, 1)
        if p.kind == "dot":
            if c.kind == "dot" and c.op == p.op:
                if pv & (c.src - c.srcC): n = max(n, 3)
            elif pv & (c.src | c.dst): n = max(n, 3)
    if p.kind == "mfma":
        if c.kind == "mfma":
            if pv & c.srcAB: n = max(n, 8)
            if pv & c.srcC and not (pv == c.srcC and c.op == p.op): n = max(n, 6)
            if pv & c.dst and not (pv & c.srcC): n = max(n, 6)
        elif c.kind in VALU_KINDS + ("vmem", "dma", "ds"):
            if pv & (c.src | c.dst): n = max(n, 8)
        if c.kind in VALU_KINDS and p.srcC & c.dst: n = max(n, 3)
    if p.kind == "vmem" and p.store_data:
        if c.kind in VALU_KINDS and p.store_data & c.dst: n = max(n, 2)
        elif p.store_data & c.dst: n = max(n, 1)
    if p.kind == "salu" and ("s", "m0") in p.dst:
        if c.kind == "dma": n = max(n, 1)
        if c.kind in VALU_KINDS and ("s", "m0") in c.src: n = max(n, 1)
    return n

class Asm:
    def __init__(self):
        self.ins = []
        self.vm = []
        self.lg = []
        self.nlabel = 0
        self.padded = 0
    def raw(self, text):
        for line in text.split("\n"):
            line = line.strip()
            if line: self._emit(line)
    __call__ = raw
    def _emit(self, line):
        c = Ins(line)
        if c.kind not in ("label", "nop"):
            dist = 0; req = 0
            for p in reversed(self.ins[-14:]):
                n = need(p, c) if p.kind not in ("label", "nop") else 0
                if n > dist: req = max(req, n - dist)
                dist += p.ws
                if dist >= 8: break
            if req:
                self.padded += req
                self.ins.append(Ins(f"s_nop {req-1}"))
        self.ins.append(c)
    def vmem(self, text, tag=None):
        self.raw(text); self.vm.append(tag)
        assert len(self.vm) <= 63, "vmcnt overflow"
    def lds(self, text, tag=None):
        self.raw(text); self.lg.append(tag)
    def _cnt(self, q, tag):
        idx = [i for i, t in enumerate(q) if t == tag]
        if not idx: return None
        return len(q) - 1 - idx[-1]
    def wait(self, vm=None, lg=None):
        parts = []
        if vm is not None:
            n = 0 if vm == "all" else self._cnt(self.vm, vm)
            if n is not None and (vm == "all" or len(self.vm) > n):
                parts.append(f"vmcnt({n})"); self.vm = self.vm[len(self.vm) - n:] if n else []
        if lg is not None:
            n = 0 if lg == "all" else self._cnt(self.lg, lg)
            if n is not None:
                n = min(n, 14)
                parts.append(f"lgkmcnt({n})"); self.lg = self.lg[len(self.lg) - n:] if n else []
        if parts: self.raw("s_waitcnt " + " ".join(parts))
    def label(self, base="L"):
        self.nlabel += 1
        return f"{base}_{self.nlabel}"
    def text(self):
        out = []
        for i in self.ins:
            out.append(i.text if i.kind == "label" else "    " + i.text)
        return "\n".join(out) + "\n"
```

```python
import sys, struct
from asmlib import Asm

NAME = "interleave_layers__sliding_local_dilated__dense_activation_mish__prompt"
KB = 1024

def f32(x): return "0x%08x" % struct.unpack("<I", struct.pack("<f", x))[0]

class Cfg:
    stamps = False
    force_slow = False
    stop_after = 99
    spin_max = 1 << 17

X0, WQKV, WO, W1, B1, W2, OUT, DBG, WS = [f"s[{8+4*i}:{11+4*i}]" for i in range(9)]
sW, sR, sC, sMH, sNB = "s44", "s45", "s46", "s47", "s48"
sRB0   = "s49"
sRD, sWR, sSTEP = "s50", "s51", "s52"
sSLOW  = "s53"
sFLA   = "s54"
sFLB   = "s55"
sPLA   = "s56"
sPLB   = "s57"
sROW   = "s58"
sP0    = "s59"
sCEN   = "s60"
sPAGE  = "s61"
sHAS   = "s62"
sT = [f"s{64+i}" for i in range(24)]
sSTMP = "s[90:91]"; sSPIN = "s92"

O_X, O_ST, O_FL, O_HALO, O_H = 0, 128*KB, 136*KB, 140*KB, 160*KB
HT = 44*KB
ARENA = 8 << 20
WS_SIZE = 80 << 20
O_STAMP = 72 << 20

L_X, L_Z, L_M = 0, 96*KB, 144*KB
PAGE = 12*KB
L_KV = L_M
L_STT = L_M + 8*KB
L_CSP = L_M + 10*KB
L_CS = L_M + 12*KB
L_BI = L_M + 12*KB + 512
LDS_BYTES = 160*KB

vL, vL16, vT0, vT1, vT0h, vT1h, vZ0, vZ1 = [f"v{i}" for i in range(8)]
vDQ, vD1, vDP, vXst, vPA, vPB, vSTL, vG16 = [f"v{i}" for i in range(8, 16)]
ONES = 16
XR = 20
vCSV = 28
vL8, vSTAMP = "v30", "v31"
vPGW = "v32"
vTH = "v33"
vTMP = 34
VB = 40

def vr(b, n=4): return f"v[{b}:{b+n-1}]"
def ar(b, n=4): return f"a[{b}:{b+n-1}]"
MF = "v_mfma_f32_16x16x32_bf16"
MF16 = "v_mfma_f32_16x16x16_bf16"

class Gen:
    def __init__(self, cfg):
        self.c = cfg
        self.a = Asm()
        self.nst = 0
        self.stn = []

    def stamp(self, name):
        if not self.c.stamps: return
        a = self.a
        a.wait(lg="all")
        a(f"s_memtime {sSTMP}\ns_waitcnt lgkmcnt(0)\nv_writelane_b32 {vSTAMP}, s90, {self.nst}")
        self.stn.append(name); self.nst += 1

    def dma(self, srd, voff, soff, ldsbase, imm=0, tag="dma"):
        a = self.a
        if isinstance(ldsbase, tuple):
            a(f"s_add_u32 m0, {ldsbase[0]}, {ldsbase[1] - imm}")
        else:
            assert ldsbase - imm >= 0
            a(f"s_mov_b32 m0, {ldsbase - imm}")
        a.vmem(f"buffer_load_dwordx4 {voff}, {srd}, {soff} offen offset:{imm} lds", tag)

    def store2(self, items):
        a = self.a
        ls, le = a.label("L_slow"), a.label("L_st")
        a(f"s_cmp_lg_u32 {sSLOW}, 0\ns_cbranch_scc1 {ls}")
        for t in items: a(t)
        a(f"s_branch {le}\n{ls}:")
        a("s_nop 1")
        for t in items:
            a(t + " sc1" if t.startswith("buffer_") else t)
        a(f"{le}:")
        a("s_nop 1")
        for t in items:
            if t.startswith("buffer_"): a.vm.append("st")

    def flag(self, saddr, val):
        a = self.a
        a.wait(vm="all")
        a(f"v_mov_b32 v{vTMP}, {val}\nv_mov_b32 v{vTMP+1}, 0")
        a("s_mov_b64 exec, 1")
        self.store2([f"buffer_store_dword v{vTMP}, v{vTMP+1}, {WS}, {saddr} offen"])
        a("s_mov_b64 exec, -1")

    def poll(self, voff, sline, val):
        a = self.a
        lp, ld = a.label("L_poll"), a.label("L_got")
        a(f"s_mov_b32 {sSPIN}, 0")
        a(f"{lp}:")
        a(f"buffer_load_dword v{vTMP+2}, {voff}, {WS}, {sline} offen sc1")
        a("s_waitcnt vmcnt(0)")
        a(f"v_cmp_gt_u32 vcc, {val}, v{vTMP+2}")
        a(f"s_cbranch_vccz {ld}")
        a(f"s_add_u32 {sSPIN}, {sSPIN}, 1\ns_cmp_lt_u32 {sSPIN}, {self.c.spin_max}\ns_cbranch_scc1 {lp}")
        a(f"{ld}:")
        a.vm = []

    def next_arena(self):
        self.a(f"s_mov_b32 {sRD}, {sWR}\ns_add_u32 {sWR}, {sWR}, {sSTEP}")

    def trX(self, dst, blk, t, tag):
        if blk < 65536: v = (vT0, vT1)[t]; off = blk
        else: v = (vT0h, vT1h)[t]; off = blk - 65536
        self.a.lds(f"ds_read_b64_tr_b16 {dst}, {v} offset:{off}", tag)

    @staticmethod
    def xblk(ks, p, h): return L_X + ((ks * 2 + h) * 3 + p) * KB

    def dma_x(self, which, ks, h, stmp):
        raise NotImplementedError

    def stage_issue(self, rnd):
        a = self.a
        for j in range(3):
            idx = rnd * 3 + j
            if idx < 4:
                srd = WO
                a(f"s_lshl_b32 {sT[20]}, {sW}, 2\ns_add_u32 {sT[20]}, {sT[20]}, {idx}")
            else:
                srd = W2
                a(f"s_mul_i32 {sT[20]}, {sW}, 11\ns_add_u32 {sT[20]}, {sT[20]}, {idx-4}\ns_min_u32 {sT[20]}, {sT[20]}, 42")
            a(f"s_lshl_b32 {sT[20]}, {sT[20]}, 15\ns_lshl_b32 {sT[21]}, {sNB}, 7\ns_add_u32 {sT[20]}, {sT[20]}, {sT[21]}")
            for h in range(2):
                if h: a(f"s_add_u32 {sT[20]}, {sT[20]}, {16*KB}")
                for p in range(2):
                    self.dma(srd, vDP, sT[20], (sPAGE, (j*4 + h*2 + p) * KB), imm=p*64, tag=f"stage{rnd}")

    def stage_reads(self, rnd):
        out = []
        for j in range(3):
            idx = rnd * 3 + j
            for h in range(2):
                for p in range(2):
                    for t in range(2):
                        base = idx * 16 + (p*2 + t) * 4 + h * 2
                        out.append(f"ds_read_b64_tr_b16 {ar(base, 2)}, {(vZ0, vZ1)[t]} offset:{(j*4 + h*2 + p) * KB}")
        return out

    def stage_consume(self, rnd):
        a = self.a
        a.wait(vm=f"stage{rnd}")
        for t in self.stage_reads(rnd): a.lds(t, "stg")
        a.wait(lg="all")
        if rnd == 4:
            l = a.label("L_z")
            a(f"s_cmp_lg_u32 {sW}, 3\ns_cbranch_scc1 {l}")
            for i in range(16): a(f"v_accvgpr_write_b32 a{14*16+i}, 0")
            a(f"{l}:\ns_nop 1")

    def wq_dma(self, ks_list):
        raise NotImplementedError

    def x_dma_group(self, which, g4, tag):
        a = self.a
        stride = 3072 if which == "q" else 2752
        srd, voff = (WQKV, vDQ) if which == "q" else (W1, vD1)
        s, m = sT[20], sT[21]
        a(f"s_add_u32 {s}, {sW}, {4*g4}\ns_mul_i32 {m}, {s}, {6*KB}\ns_mul_i32 {s}, {s}, {32*stride}")
        a(f"s_lshl_b32 {sT[22]}, {sC if which == 'q' else sP0}, 6\ns_add_u32 {s}, {s}, {sT[22]}")
        for h in range(2):
            if h: a(f"s_add_u32 {s}, {s}, {4*stride}")
            for p in range(3):
                imm = p * (1024 if which == "q" else 64)
                self.dma(srd, voff, s, (m, L_X + (h*3 + p) * KB), imm=imm, tag=tag)

    def x_dma_own(self, which, j, tag):
        a = self.a
        stride = 3072 if which == "q" else 2752
        srd, voff = (WQKV, vDQ) if which == "q" else (W1, vD1)
        s, m = sT[20], sT[21]
        a(f"s_lshl_b32 {s}, {sW}, 2\ns_add_u32 {s}, {s}, {j}\ns_mul_i32 {m}, {s}, {6*KB}\ns_mul_i32 {s}, {s}, {32*stride}")
        a(f"s_lshl_b32 {sT[22]}, {sC if which == 'q' else sP0}, 6\ns_add_u32 {s}, {s}, {sT[22]}")
        for h in range(2):
            if h: a(f"s_add_u32 {s}, {s}, {4*stride}")
            for p in range(3):
                imm = p * (1024 if which == "q" else 64)
                self.dma(srd, voff, s, (m, L_X + (h*3 + p) * KB), imm=imm, tag=tag)

    def stats_finish(self, b):
        a = self.a
        t = vTMP
        a(f"v_mul_f32 v{b}, {f32(1/512)}, v{b}")
        a(f"v_mul_f32 v{t}, v{b}, v{b}")
        a(f"v_fma_f32 v{b+1}, v{b+1}, {sT[23]}, -v{t}")
        a(f"v_max_f32 v{b+1}, 0, v{b+1}")
        a(f"v_add_f32 v{b+1}, {f32(1e-5)}, v{b+1}")
        a(f"v_rsq_f32 v{t}, v{b+1}")
        a(f"v_mul_f32 v{b+1}, v{b}, v{t}")
        a(f"v_mov_b32 v{b}, v{t}")
        a(f"v_sub_f32 v{b+1}, 0, v{b+1}")

    def gsum2(self, b):
        a = self.a
        t = vTMP
        a(f"v_permlane16_swap_b32 v{b}, v{b+1}")
        a(f"v_add_f32 v{b}, v{b}, v{b+1}")
        a(f"v_mov_b32 v{t}, v{b}")
        a(f"v_permlane32_swap_b32 v{b}, v{t}")
        a(f"v_add_f32 v{b}, v{b}, v{t}")
        a(f"v_mov_b32 v{b+1}, v{b}")
        a(f"v_permlane16_swap_b32 v{b}, v{b+1}")

    def prologue(self):
        a = self.a
        a("s_cmp_ge_u32 s2, 256\ns_cbranch_scc1 L_end")
        for srd, off in ((8, 0), (12, 8), (16, 16), (20, 32), (24, 40), (28, 48), (32, 56), (36, 64), (40, 72)):
            a(f"s_load_dwordx2 s[{srd}:{srd+1}], s[0:1], {off}")
        sizes = {8: 2048*1024, 12: 512*3072, 16: 512*1024, 20: 512*2752, 24: 2752, 28: 1376*1024, 32: 2048*1024, 36: 256, 40: WS_SIZE}
        for srd, n in sizes.items():
            a(f"s_mov_b32 s{srd+2}, {n}\ns_mov_b32 s{srd+3}, 0x20000")
        a(f"v_lshrrev_b32 v1, 6, v0\nv_and_b32 v0, 63, v0\nv_readfirstlane_b32 {sW}, v1")
        if self.c.stamps: a(f"v_mov_b32 {vSTAMP}, 0")
        a(f"s_and_b32 {sR}, s2, 7\ns_lshl_b32 {sR}, {sR}, 1\ns_bfe_u32 {sT[0]}, s2, 0x10003\ns_add_u32 {sR}, {sR}, {sT[0]}")
        a(f"s_lshr_b32 {sC}, s2, 4\ns_lshr_b32 {sMH}, {sC}, 3\ns_and_b32 {sNB}, {sC}, 7")
        a(f"s_lshl_b32 {sRB0}, {sR}, 19")
        a(f"s_and_b32 {sT[0]}, {sR}, 7\ns_lshl_b32 {sROW}, {sT[0]}, 8\ns_lshr_b32 {sT[1]}, {sR}, 3\ns_add_u32 {sROW}, {sROW}, {sT[1]}\ns_lshl_b32 {sROW}, {sROW}, 10")
        a(f"s_cmp_lg_u32 {sT[0]}, 0\ns_cselect_b32 {sHAS}, 1, 0")
        a(f"s_lshr_b32 {sT[0]}, {sC}, 2\ns_and_b32 {sT[1]}, {sC}, 3\ns_mul_i32 {sT[1]}, {sT[1]}, 3")
        a(f"s_cmp_eq_u32 {sT[0]}, 3\ns_cselect_b32 {sT[2]}, 7, 8\ns_min_u32 {sT[1]}, {sT[1]}, {sT[2]}")
        a(f"s_mul_i32 {sP0}, {sT[0]}, 11\ns_add_u32 {sP0}, {sP0}, {sT[1]}")
        a(f"s_add_u32 {sT[0]}, {sRB0}, {O_FL}")
        a(f"s_lshl_b32 {sT[1]}, {sW}, 6\ns_add_u32 {sPLB}, {sT[0]}, {sT[1]}")
        a(f"s_lshl_b32 {sT[1]}, {sC}, 2\ns_add_u32 {sFLA}, {sPLB}, {sT[1]}")
        a(f"s_lshl_b32 {sT[1]}, {sMH}, 7\ns_add_u32 {sT[0]}, {sT[0]}, {sT[1]}")
        a(f"s_lshl_b32 {sT[1]}, {sW}, 4\ns_add_u32 {sPLA}, {sT[0]}, {sT[1]}")
        a(f"s_lshl_b32 {sT[1]}, {sW}, 3\ns_add_u32 {sT[1]}, {sT[1]}, {sNB}\ns_lshl_b32 {sT[1]}, {sT[1]}, 2\ns_add_u32 {sFLB}, {sT[0]}, {sT[1]}")
        a(f"s_mul_i32 {sPAGE}, {sW}, {PAGE}\ns_add_u32 {sPAGE}, {sPAGE}, {L_Z}")
        a(f"s_getreg_b32 {sT[0]}, hwreg(HW_REG_XCC_ID)\ns_and_b32 {sT[0]}, {sT[0]}, 15")
        a(f"s_mul_i32 {sT[1]}, {sT[0]}, {sT[0]}\ns_lshl_b32 {sT[1]}, {sT[1]}, 16\ns_lshl_b32 {sT[0]}, {sT[0]}, 8")
        a(f"s_add_u32 {sCEN}, {sT[0]}, {sT[1]}\ns_add_u32 {sCEN}, {sCEN}, 1")
        a(f"s_mov_b32 {sT[23]}, {f32(1/512)}")
        t0, t1, t2, t3 = [f"v{vTMP+i}" for i in range(4)]
        a(f"v_lshlrev_b32 {vL16}, 4, {vL}\nv_lshlrev_b32 {vL8}, 3, {vL}")
        a(f"v_and_b32 {t0}, 15, {vL}\nv_lshrrev_b32 {t1}, 4, {vL}")
        a(f"v_lshlrev_b32 {vG16}, 4, {t1}")
        a(f"v_lshrrev_b32 {t2}, 2, {vL}\nv_lshlrev_b32 {vT0}, 6, {t2}")
        a(f"v_and_b32 {t3}, 1, {t1}\nv_lshl_or_b32 {vT0}, {t3}, 5, {vT0}")
        a(f"v_and_b32 {t3}, 3, {vL}\nv_lshl_or_b32 {vT0}, {t3}, 3, {vT0}")
        a(f"v_xor_b32 {vT1}, 32, {vT0}\nv_add_u32 {vT0h}, 0x10000, {vT0}\nv_add_u32 {vT1h}, 0x10000, {vT1}")
        a(f"v_add_u32 {vZ0}, {sPAGE}, {vT0}\nv_add_u32 {vZ1}, {sPAGE}, {vT1}\nv_add_u32 {vPGW}, {sPAGE}, {vL16}")
        a(f"v_and_b32 {vDP}, 1, {t1}\nv_lshlrev_b32 {vDP}, 1, {vDP}\nv_xor_b32 {t3}, {vDP}, {t3}\nv_lshlrev_b32 {t3}, 4, {t3}")
        a(f"v_lshl_or_b32 {vDP}, {t2}, 10, {t3}")
        a(f"v_and_b32 {t2}, 3, {t2}\nv_lshl_or_b32 {t2}, {t1}, 3, {t2}")
        a(f"v_mul_u32_u24 {vDQ}, 3072, {t2}\nv_add_u32 {vDQ}, {vDQ}, {t3}")
        a(f"v_mul_u32_u24 {vD1}, 2752, {t2}\nv_add_u32 {vD1}, {vD1}, {t3}")
        a(f"v_and_b32 {t2}, 1, {t1}\nv_lshlrev_b32 {t2}, 1, {t2}\nv_lshrrev_b32 {t3}, 1, {t1}\nv_or_b32 {t2}, {t2}, {t3}")
        a(f"v_lshl_or_b32 {vXst}, {t2}, 4, {t0}\nv_lshlrev_b32 {vXst}, 4, {vXst}")
        a(f"v_bfe_u32 {t2}, {vL}, 2, 1\nv_and_b32 {t3}, 3, {vL}\nv_lshlrev_b32 {t3}, 2, {t3}\nv_lshl_or_b32 {vPA}, {t2}, 6, {t3}")
        a(f"v_lshlrev_b32 {vPB}, 2, {t0}")
        a(f"v_lshlrev_b32 {vSTL}, 3, {t0}\nv_lshl_or_b32 {vSTL}, {t1}, 8, {vSTL}")
        for i in range(4): a(f"v_mov_b32 v{ONES+i}, 0x3f803f80")
        a(f"s_and_b32 {sT[0]}, {sW}, 1\ns_lshl_b32 {sT[0]}, {sT[0]}, 5\nv_xor_b32 {vTH}, {sT[0]}, {vT0}")
        a(f"s_lshr_b32 {sT[0]}, {sW}, 1\ns_add_u32 {sT[0]}, {sT[0]}, 1\ns_lshl_b32 {sT[0]}, {sT[0]}, 10\nv_add_u32 {vTH}, {sT[0]}, {vTH}")
        a("s_waitcnt lgkmcnt(0)")
        self.stamp("start")

    def wide_gemm(self, areg, acc, wf, pre_k, swapV, extra_mfma=None, fill=None):
        a = self.a
        LA = 5
        def rd(f):
            if f >= 96: return
            ks, j = divmod(f, 6)
            s = wf + (f % 8) * 4
            for h in range(2):
                self.trX(vr(s + 2*h, 2), self.xblk(ks, j // 2, h), j % 2, f"w{f}")
        started = False
        for ks in range(16):
            sync = pre_k(ks)
            if sync or not started:
                for f in range(ks*6, ks*6 + LA): rd(f)
                started = True
            for j in range(6):
                f = ks * 6 + j
                s = wf + (f % 8) * 4
                nf = f + LA
                ok = nf < 96 and not self.sync_at(nf // 6, ks)
                a.wait(lg=f"w{f}")
                for T in range(2):
                    d = acc + (j*2 + T) * 4
                    c = "0" if ks == 0 else vr(d)
                    if swapV and j >= 4: a(f"{MF} {vr(d)}, {vr(areg(ks, T))}, {vr(s)}, {c}")
                    else: a(f"{MF} {vr(d)}, {vr(s)}, {vr(areg(ks, T))}, {c}")
                    if ok:
                        k2, j2 = divmod(nf, 6)
                        self.trX(vr(wf + (nf % 8)*4 + 2*T, 2), self.xblk(k2, j2 // 2, T), j2 % 2, f"w{nf}")
                if extra_mfma: extra_mfma(ks, j, s)
                if fill and f in fill:
                    for fn in fill[f]: fn()

    def sync_at(self, ks_next, ks_cur):
        return ks_next != ks_cur and ks_next in self.sync_set

    def p1(self, ps):
        a = self.a
        A0 = VB
        ACC = A0 + 96
        WF = ACC + 48
        ST = WF + 32
        HA = ST + 6
        R = HA + 4
        RING = 12
        areg = lambda ks, T: A0 + ((ks % RING) * 2 + T) * 4
        hreg = lambda ks: A0 + 32 + ks * 4
        vXrow, vXh = f"v{R}", f"v{R+1}"
        sA0, sA1, sH = sT[0], sT[1], sT[2]
        STL = R + 2
        if ps == 0:
            a(f"v_and_b32 {vXrow}, 15, {vL}\nv_lshlrev_b32 {vXrow}, 11, {vXrow}\nv_add_u32 {vXrow}, {vXrow}, {vG16}")
            a(f"s_lshl_b32 {sA0}, {sW}, 16\ns_add_u32 {sA0}, {sA0}, {sROW}\ns_add_u32 {sA1}, {sA0}, {32*KB}")
            a(f"s_cmp_lg_u32 {sHAS}, 0\ns_cselect_b32 {sT[3]}, 0, 0x40000000\ns_cselect_b32 {sH}, {32*KB}, 0\ns_sub_u32 {sH}, {sROW}, {sH}")
            a(f"v_add_u32 {vXh}, {sT[3]}, {vXrow}")
            def lda(ks, T): a.vmem(f"buffer_load_dwordx4 {vr(areg(ks, T))}, {vXrow}, {X0}, {(sA0, sA1)[T]} offen offset:{ks*64}", f"a{ks}")
            def ldh(ks): a.vmem(f"buffer_load_dwordx4 {vr(hreg(ks))}, {vXh}, {X0}, {sH} offen offset:{ks*64}", f"h{ks}")
            def grp(g4, w=True, x=True):
                if w: self.x_dma_group("q", g4, f"g{g4}")
                if x:
                    for k2 in range(2):
                        for T in range(2):
                            for ks in (4*g4 + 2*k2, 4*g4 + 2*k2 + 1): lda(ks, T)
                    a.vm[-1] = f"g{g4}" if not w or True else a.vm[-1]
            l = a.label("L_nz")
            a(f"s_or_b32 {sT[3]}, {sC}, {sW}\ns_cmp_lg_u32 {sT[3]}, 0\ns_cbranch_scc1 {l}")
            a(f"v_mov_b32 v{vTMP}, 0\nv_mov_b32 v{vTMP+1}, 0\ns_add_u32 {sT[3]}, {sRB0}, {O_FL}")
            a(f"buffer_store_dwordx2 {vr(vTMP, 2)}, {vL8}, {WS}, {sT[3]} offen sc1")
            a(f"{l}:")
            grp(0); grp(1)
            l = a.label("L_nc")
            a(f"s_cmp_lg_u32 {sW}, 0\ns_cbranch_scc1 {l}")
            a(f"v_mov_b32 v{vTMP+2}, {sCEN}\nv_mov_b32 v{vTMP+3}, 0\ns_lshl_b32 {sT[3]}, {sR}, 4\ns_mov_b64 exec, 1")
            a(f"buffer_atomic_add v{vTMP+2}, v{vTMP+3}, {DBG}, {sT[3]} offen sc1")
            a(f"s_mov_b64 exec, -1\n{l}:")
            grp(2); grp(3, x=False)
            for i in range(6): a(f"v_mov_b32 v{ST+i}, 0")
            self.sync_set = {4, 8, 12}
            def pre_k(ks):
                if ks % 4: return False
                g4 = ks // 4
                a.wait(vm=f"g{g4}")
                a("s_barrier")
                if g4 == 0:
                    l = a.label("L_nl")
                    a(f"s_or_b32 {sT[3]}, {sC}, {sW}\ns_cmp_lg_u32 {sT[3]}, 0\ns_cbranch_scc1 {l}")
                    a(f"v_mov_b32 v{vTMP+2}, 1\nv_mov_b32 v{vTMP+3}, 4\ns_lshl_b32 {sT[3]}, {sR}, 4\ns_mov_b64 exec, 1")
                    a(f"buffer_atomic_add v{vTMP+2}, v{vTMP+3}, {DBG}, {sT[3]} offen sc1")
                    a(f"s_mov_b64 exec, -1\n{l}:")
                if g4 == 1:
                    grp(3, w=False)
                    a(f"v_lshrrev_b32 v{vTMP}, 1, {vG16}\nv_sub_u32 v{vTMP}, {vXrow}, v{vTMP}")
                    a(f"s_lshl_b32 {sT[3]}, {sMH}, 2\ns_add_u32 {sT[3]}, {sT[3]}, {sW}\ns_lshl_b32 {sT[3]}, {sT[3]}, 15\ns_add_u32 {sT[3]}, {sT[3]}, {sROW}")
                    a(f"s_lshl_b32 {sT[4]}, {sNB}, 7\ns_add_u32 {sT[3]}, {sT[3]}, {sT[4]}")
                    for t in range(4):
                        a.vmem(f"buffer_load_dwordx2 {vr(XR+2*t, 2)}, v{vTMP}, {X0}, {sT[3]} offen offset:{32*t}", "xr")
                if g4 == 3:
                    for k in range(16): ldh(k)
                    self.stage_issue(0)
                return True
            def extra(ks, j, s):
                d = (240 + j*4) if j < 4 else (232 + (j-4)*4)
                c = "0" if ks == 0 else ar(d)
                if j < 4: a(f"{MF} {ar(d)}, {vr(s)}, {vr(ONES)}, {c}")
                else: a(f"{MF} {ar(d)}, {vr(ONES)}, {vr(s)}, {c}")
                if j < 4:
                    for T in range(2):
                        r = areg(ks, T) + j
                        a(f"v_dot2c_f32_bf16 v{ST+2*T}, v{r}, v{ONES}")
                        a(f"v_dot2c_f32_bf16 v{ST+2*T+1}, v{r}, v{r}")
            self.wide_gemm(areg, ACC, WF, pre_k, True, extra_mfma=extra)
        else:
            self.next_arena()
            self.poll(vPB, sPLB, 4)
            self.stamp("p1.polled")
            a(f"s_lshl_b32 {sA0}, {sW}, 15\ns_add_u32 {sA0}, {sA0}, {sRD}\ns_add_u32 {sA1}, {sA0}, {16*KB}")
            a(f"s_lshl_b32 {sT[3]}, {sW}, 11\ns_add_u32 {sT[3]}, {sT[3]}, {sRD}\ns_add_u32 {sT[3]}, {sT[3]}, {O_ST}")
            def lda(ks):
                if ks >= 16: return
                if ks and ks % 4 == 0: a(f"s_add_u32 {sA0}, {sA0}, 4096\ns_add_u32 {sA1}, {sA1}, 4096")
                for T in range(2):
                    a.vmem(f"buffer_load_dwordx4 {vr(areg(ks, T))}, {vL16}, {WS}, {(sA0, sA1)[T]} offen offset:{(ks%4)*KB} sc1", f"a{ks}")
            PD = 5
            for ks in range(PD): lda(ks)
            for T in range(2):
                for n in range(2):
                    a.vmem(f"buffer_load_dwordx2 {vr(STL + T*4 + n*2, 2)}, {vSTL}, {WS}, {sT[3]} offen offset:{T*KB + n*128} sc1", "stl")
            a("s_barrier")
            self.sync_set = set()
            def pre_k(ks):
                lda(ks + PD)
                a.wait(vm=f"a{ks}")
                if ks == 12:
                    l = a.label("L_nh")
                    a.wait(vm="all")
                    a(f"s_cmp_eq_u32 {sHAS}, 0\ns_cbranch_scc1 {l}")
                    a(f"s_sub_u32 {sH}, {sRB0}, {512*KB - O_FL - 256}")
                    a(f"v_and_b32 v{vTMP+3}, 28, {vPB}")
                    self.poll(f"v{vTMP+3}", sH, 1)
                    a(f"{l}:")
                    a(f"s_cmp_lg_u32 {sHAS}, 0\ns_cselect_b32 {sT[3]}, 0, 0x40000000\ns_cselect_b32 {sH}, {512*KB - O_HALO}, 0\ns_sub_u32 {sH}, {sRB0}, {sH}")
                    a(f"v_add_u32 {vXh}, {sT[3]}, {vL16}\nv_add_u32 {vXrow}, {sT[3]}, {vSTL}")
                    for k in range(16):
                        if k and k % 4 == 0: a(f"s_add_u32 {sH}, {sH}, 4096")
                        a.vmem(f"buffer_load_dwordx4 {vr(hreg(k))}, {vXh}, {WS}, {sH} offen offset:{(k%4)*KB} sc1", f"h{k}")
                    a(f"s_add_u32 {sH}, {sH}, 4096")
                    for n in range(2):
                        a.vmem(f"buffer_load_dwordx2 {vr(STL + 8 + n*2, 2)}, {vXrow}, {WS}, {sH} offen offset:{n*128} sc1", "sth")
                return False
            self.wide_gemm(areg, ACC, WF, pre_k, True)
        self.stamp("p1.main")
        def hrd(k):
            for h in range(2):
                off = (k*2 + h) * 3 * KB
                if off >= 65536 - 2*KB:
                    pass
                a.lds(f"ds_read_b64_tr_b16 {vr(WF + (k%8)*4 + 2*h, 2)}, {vTH if off < 60*KB else 'v%d' % (vTMP+4)} offset:{off if off < 60*KB else off - 60*KB}", f"hw{k}")
        a(f"v_add_u32 v{vTMP+4}, {60*KB}, {vTH}")
        HB = R + 14
        for k in range(6): hrd(k)
        for k in range(16):
            a.wait(vm=f"h{k}", lg=f"hw{k}")
            s = WF + (k % 8) * 4
            a(f"{MF} {vr(HA)}, {vr(s)}, {vr(hreg(k))}, {'0' if k == 0 else vr(HA)}")
            a(f"{MF} {vr(HB)}, {vr(hreg(k))}, {vr(s)}, {'0' if k == 0 else vr(HB)}")
            if k + 6 < 16: hrd(k + 6)
            if ps == 0:
                for j in range(4):
                    a(f"v_dot2c_f32_bf16 v{ST+4}, v{hreg(k)+j}, v{ONES}")
                    a(f"v_dot2c_f32_bf16 v{ST+5}, v{hreg(k)+j}, v{hreg(k)+j}")
        if ps == 1:
            a.wait(vm="sth")
            for T in range(3):
                a(f"v_pk_add_f32 {vr(ST+2*T, 2)}, {vr(STL+4*T, 2)}, {vr(STL+4*T+2, 2)}")
        for T in range(3):
            self.gsum2(ST + 2*T); self.stats_finish(ST + 2*T)
        a(f"s_lshl_b32 {sT[3]}, {sW}, 9\ns_add_u32 {sT[3]}, {sT[3]}, {L_STT}")
        a(f"v_add_u32 v{vTMP}, {sT[3]}, {vPB}\nv_add_u32 v{vTMP+1}, {sT[3]}, {vG16}")
        for T in range(3):
            a.lds(f"ds_write2_b32 v{vTMP}, v{ST+2*T}, v{ST+2*T+1} offset0:{T*32} offset1:{T*32+16}", "stw")
        TS = A0
        for T in range(3):
            a.lds(f"ds_read_b128 {vr(TS+8*T)}, v{vTMP+1} offset:{T*128}", "tsr")
            a.lds(f"ds_read_b128 {vr(TS+8*T+4)}, v{vTMP+1} offset:{T*128+64}", "tsr")
        CS = A0 + 24
        for i in range(16): a(f"v_accvgpr_read_b32 v{CS+i}, a{240+i}")
        if ps == 0:
            a(f"v_accvgpr_read_b32 v{vCSV}, a232\nv_accvgpr_read_b32 v{vCSV+1}, a236")
        QP = A0 + 40
        KP = A0 + 48
        VP = A0 + 60
        U = A0 + 72
        def fixT(acc, cs, st, dst, u):
            for p in range(2):
                a(f"v_pk_mul_f32 {vr(u+2*p, 2)}, {vr(cs+2*p, 2)}, {vr(st, 2)} op_sel:[0,1] op_sel_hi:[1,1]")
            for p in range(2):
                a(f"v_pk_fma_f32 {vr(u+2*p, 2)}, {vr(acc+2*p, 2)}, {vr(st, 2)}, {vr(u+2*p, 2)} op_sel_hi:[1,0,1]")
            for p in range(2):
                a(f"v_cvt_pk_bf16_f32 v{dst+p}, v{u+2*p}, v{u+2*p+1}")
        def fixV(acc, h, ts, dst, u, csreg=None):
            sel = f"op_sel:[0,{h}] op_sel_hi:[1,{h}]"
            for p in range(2):
                a(f"v_pk_mul_f32 {vr(u+2*p, 2)}, {vr(ts+4+2*p, 2)}, {vr(csreg or vCSV, 2)} {sel}")
            for p in range(2):
                a(f"v_pk_fma_f32 {vr(u+2*p, 2)}, {vr(acc+2*p, 2)}, {vr(ts+2*p, 2)}, {vr(u+2*p, 2)}")
            for p in range(2):
                a(f"v_cvt_pk_bf16_f32 v{dst+p}, v{u+2*p}, v{u+2*p+1}")
        acc = lambda j, T: ACC + (j*2 + T) * 4
        for h in range(2): fixT(acc(2+h, 1), CS + (2+h)*4, ST + 2, KP + h*6 + 4, U + 4*h)
        a.wait(lg="tsr")
        for h in range(2): fixV(acc(4+h, 1), h, TS + 8, VP + h*6 + 4, U + 4*h)
        a(f"s_add_u32 {sT[3]}, {sW}, 1\ns_lshl_b32 {sT[3]}, {sT[3]}, 11\ns_add_u32 {sT[3]}, {sT[3]}, {L_KV}\nv_add_u32 v{vTMP}, {sT[3]}, {vL8}")
        l = a.label("L_nx")
        a(f"s_cmp_eq_u32 {sW}, 3\ns_cbranch_scc1 {l}")
        for h in range(2):
            a(f"ds_write_b64 v{vTMP}, {vr(KP + h*6 + 4, 2)} offset:{h*512}")
            a(f"ds_write_b64 v{vTMP}, {vr(VP + h*6 + 4, 2)} offset:{1024 + h*512}")
        a(f"{l}:")
        lv, le = a.label("L_hv"), a.label("L_he")
        HP = U + 8
        a(f"s_cmp_ge_u32 {sW}, 2\ns_cbranch_scc1 {lv}")
        a(f"s_cmp_eq_u32 {sW}, 0\ns_cselect_b64 vcc, -1, 0")
        for i in range(4): a(f"v_cndmask_b32 v{HP+2+i}, v{CS+12+i}, v{CS+8+i}, vcc")
        fixT(HA, HP + 2, ST + 4, HP, U)
        a(f"s_branch {le}\n{lv}:\ns_nop 1")
        a(f"s_cmp_eq_u32 {sW}, 2\ns_cselect_b64 vcc, -1, 0")
        a(f"v_cndmask_b32 v{HP+2}, v{vCSV+1}, v{vCSV}, vcc")
        fixV(HB, 0, TS + 16, HP, U, csreg=HP + 2)
        a(f"{le}:")
        a(f"s_lshl_b32 {sT[3]}, {sW}, 9\ns_add_u32 {sT[3]}, {sT[3]}, {L_KV}\nv_add_u32 v{vTMP+1}, {sT[3]}, {vL8}")
        a(f"ds_write_b64 v{vTMP+1}, {vr(HP, 2)}")
        for h in range(2):
            for T in range(2): fixT(acc(h, T), CS + h*4, ST + 2*T, QP + h*4 + T*2, U + 4*T)
        a("s_waitcnt lgkmcnt(0)\ns_barrier"); a.lg = []
        a(f"v_subrev_u32 v{vTMP}, 2048, v{vTMP}")
        for h in range(2):
            a.lds(f"ds_read_b64 {vr(KP + h*6, 2)}, v{vTMP} offset:{h*512}", "kvp")
            a.lds(f"ds_read_b64 {vr(VP + h*6, 2)}, v{vTMP} offset:{1024 + h*512}", "kvp")
        for h in range(2): fixT(acc(2+h, 0), CS + (2+h)*4, ST, KP + h*6 + 2, U + 4*h)
        for h in range(2): fixV(acc(4+h, 0), h, TS, VP + h*6 + 2, U + 4*h)
        CM = WF
        a(f"v_lshrrev_b32 v{vTMP+1}, 2, {vG16}\nv_lshrrev_b32 v{vTMP+2}, 2, {vPB}\nv_sub_u32 v{vTMP+1}, v{vTMP+2}, v{vTMP+1}")
        a(f"v_mov_b32 v{vTMP+2}, 0xff800000")
        a(f"s_or_b32 {sT[3]}, {sHAS}, {sW}\ns_cmp_lg_u32 {sT[3]}, 0\ns_cselect_b32 {sT[3]}, 0, 0xff800000")
        for r in range(4):
            a(f"v_subrev_u32 v{vTMP+3}, {r}, v{vTMP+1}")
            a(f"v_cmp_gt_u32 vcc, 8, v{vTMP+3}")
            a(f"v_cndmask_b32 v{CM+r}, v{vTMP+2}, 0, vcc")
            a(f"v_cmp_gt_i32 vcc, -8, v{vTMP+3}")
            a(f"v_cndmask_b32 v{CM+4+r}, v{vTMP+2}, 0, vcc")
            a(f"v_or_b32 v{CM+8+r}, {sT[3]}, v{CM+4+r}")
            a(f"v_ashrrev_i32 v{vTMP+3}, 31, v{vTMP+3}")
            if r % 2 == 0: a(f"v_and_b32 v{CM+12+r//2}, 0xffff, v{vTMP+3}")
            else: a(f"v_and_b32 v{vTMP+3}, 0xffff0000, v{vTMP+3}\nv_or_b32 v{CM+12+r//2}, v{CM+12+r//2}, v{vTMP+3}")
        a.wait(lg="kvp")
        units = [(h, T) for T in range(2) for h in range(2)]
        SC = ACC
        for u, (h, T) in enumerate(units):
            q = vr(QP + h*4 + T*2, 2)
            a(f"{MF16} {vr(SC + u*8)}, {vr(KP + h*6 + 2 + T*2, 2)}, {q}, {vr(CM)}")
            a(f"{MF16} {vr(SC + u*8 + 4)}, {vr(KP + h*6 + T*2, 2)}, {q}, {vr(CM + (8 if T == 0 else 4))}")
        MX = ACC + 32
        for u in range(4):
            for r in range(4): a(f"v_max_f32 v{SC+u*8+r}, v{SC+u*8+r}, v{SC+u*8+4+r}")
            a(f"v_max3_f32 v{MX+u}, v{SC+u*8}, v{SC+u*8+1}, v{SC+u*8+2}")
            a(f"v_max_f32 v{MX+u}, v{MX+u}, v{SC+u*8+3}")
        a(f"v_permlane16_swap_b32 v{MX}, v{MX+1}\nv_permlane16_swap_b32 v{MX+2}, v{MX+3}")
        a(f"v_max_f32 v{MX}, v{MX}, v{MX+1}\nv_max_f32 v{MX+2}, v{MX+2}, v{MX+3}")
        a(f"v_permlane32_swap_b32 v{MX}, v{MX+2}")
        a(f"v_max_f32 v{MX}, v{MX}, v{MX+2}")
        cexp = 0.25 * 1.4426950408889634
        a(f"v_mul_f32 v{MX}, {f32(-cexp)}, v{MX}")
        a(f"v_mov_b32 v{MX+2}, v{MX}")
        a(f"v_permlane32_swap_b32 v{MX}, v{MX+2}")
        a(f"v_mov_b32 v{MX+1}, v{MX}\nv_mov_b32 v{MX+3}, v{MX+2}")
        a(f"v_permlane16_swap_b32 v{MX}, v{MX+1}\nv_permlane16_swap_b32 v{MX+2}, v{MX+3}")
        for u in range(4):
            for r in range(4): a(f"v_fmamk_f32 v{SC+u*8+r}, v{SC+u*8+r}, {f32(cexp)}, v{MX+u}")
        for u in range(4):
            for r in range(4): a(f"v_exp_f32 v{SC+u*8+r}, v{SC+u*8+r}")
        for u in range(4):
            b = SC + u*8
            a(f"v_cvt_pk_bf16_f32 v{b}, v{b}, v{b+1}\nv_cvt_pk_bf16_f32 v{b+1}, v{b+2}, v{b+3}")
            for p in range(2):
                a(f"v_and_b32 v{b+4+p}, v{CM+12+p}, v{b+p}")
                a(f"v_bfi_b32 v{b+6+p}, v{CM+12+p}, 0, v{b+p}")
        OA = A0
        for u, (h, T) in enumerate(units):
            a(f"{MF} {vr(OA + u*8)}, {vr(VP + h*6 + T*2)}, {vr(SC + u*8 + 4)}, 0")
            a(f"{MF} {vr(OA + u*8 + 4)}, {vr(ONES)}, {vr(SC + u*8 + 4)}, 0")
        if ps == 0: self.census()
        OF = ACC
        for u in range(4): a(f"v_rcp_f32 v{OA+u*8+4}, v{OA+u*8+4}")
        for u, (h, T) in enumerate(units):
            b = OA + u*8
            for p in range(2):
                a(f"v_pk_mul_f32 {vr(b+2*p, 2)}, {vr(b+2*p, 2)}, {vr(b+4, 2)} op_sel_hi:[1,0]")
            for p in range(2):
                a(f"v_cvt_pk_bf16_f32 v{OF + T*4 + h*2 + p}, v{b+2*p}, v{b+2*p+1}")
        if ps == 0: self.next_arena()
        a(f"s_mul_i32 {sT[3]}, {sW}, {2*HT}\ns_lshl_b32 {sT[4]}, {sC}, 10\ns_add_u32 {sT[3]}, {sT[3]}, {sT[4]}")
        a(f"s_add_u32 {sT[3]}, {sT[3]}, {sWR}\ns_add_u32 {sT[3]}, {sT[3]}, {O_H}\ns_add_u32 {sT[4]}, {sT[3]}, {HT}")
        self.store2([f"buffer_store_dwordx4 {vr(OF + 4*T)}, {vL16}, {WS}, {sT[3+T]} offen" for T in range(2)])
        self.stamp("p1.stored")
        self.flag(sFLA, ps*4 + 1)
        self.stamp("p1.flag")

    def census(self):
        a = self.a
        lp, ld = a.label("L_cen"), a.label("L_cend")
        a(f"s_sub_u32 {sT[3]}, {sR}, {sHAS}\ns_lshl_b32 {sT[3]}, {sT[3]}, 4\ns_lshl_b32 {sT[4]}, {sR}, 4")
        a(f"v_mov_b32 v{vTMP}, 0\ns_mov_b32 {sSPIN}, 0")
        a(f"{lp}:")
        a(f"buffer_load_dwordx2 {vr(vTMP+2, 2)}, v{vTMP}, {DBG}, {sT[4]} offen sc1")
        a(f"buffer_load_dwordx2 {vr(vTMP+4, 2)}, v{vTMP}, {DBG}, {sT[3]} offen sc1")
        a("s_waitcnt vmcnt(0)")
        a(f"v_readfirstlane_b32 {sT[5]}, v{vTMP+2}\nv_readfirstlane_b32 {sT[6]}, v{vTMP+3}\nv_readfirstlane_b32 {sT[7]}, v{vTMP+5}")
        a(f"s_and_b32 {sT[6]}, {sT[6]}, {sT[7]}\ns_lshl_b32 {sT[6]}, {sT[6]}, 4\ns_and_b32 {sT[6]}, {sT[6]}, {sT[5]}")
        a(f"s_cbranch_scc1 {ld}")
        a(f"s_add_u32 {sSPIN}, {sSPIN}, 1\ns_cmp_lt_u32 {sSPIN}, {self.c.spin_max}\ns_cbranch_scc1 {lp}")
        a(f"{ld}:")
        a.vm = []
        a(f"s_lshl_b32 {sT[6]}, {sCEN}, 4\ns_cmp_lg_u32 {sT[5]}, {sT[6]}\ns_cselect_b32 {sSLOW}, 1, {1 if self.c.force_slow else 0}")
        a(f"s_lshl_b32 {sSTEP}, {sSLOW}, 23\ns_mov_b32 {sWR}, {sRB0}")

    def narrow(self, ps, which):
        a = self.a
        nks = 4 if which == 2 else 11
        wb = 0 if which == 2 else 64
        ph = ps*4 + which
        last = (ph == 8)
        RING = 16
        A0 = VB
        AC = A0 + 64
        OWN = AC + 32
        PS = OWN + 16
        for i in range(8):
            a(f"v_lshlrev_b32 v{OWN+2*i}, 16, v{XR+i}\nv_and_b32 v{OWN+2*i+1}, 0xffff0000, v{XR+i}")
        self.next_arena()
        for s in range(4):
            a(f"s_add_u32 {sT[s]}, {sW}, {s+1}\ns_and_b32 {sT[s]}, {sT[s]}, 3")
            if s < 3: a(f"s_mul_i32 {sT[8]}, {sT[s]}, {PAGE}\ns_add_u32 {sT[8]}, {sT[8]}, {L_Z + s*4*KB}\nv_add_u32 v{vTMP+3+s}, {sT[8]}, {vL16}")
            a(f"s_lshl_b32 {sT[8]}, {sMH}, 2\ns_add_u32 {sT[s]}, {sT[s]}, {sT[8]}\ns_mul_i32 {sT[s]}, {sT[s]}, {HT}")
            a(f"s_mul_i32 {sT[8]}, {sW}, {nks*KB}\ns_add_u32 {sT[s]}, {sT[s]}, {sT[8]}\ns_add_u32 {sT[s]}, {sT[s]}, {sRD}\ns_add_u32 {sT[s]}, {sT[s]}, {O_H}")
        a(f"s_cmp_eq_u32 {sW}, 3\ns_cselect_b32 {sT[9]}, {KB}, 0")
        self.poll(vPA, sPLA, ph - 1)
        self.stamp(f"p{which}.polled")
        N = 4 * nks
        def lda(f):
            if f >= N: return
            s, j = divmod(f, nks)
            if j and j % 4 == 0: a(f"s_add_u32 {sT[s]}, {sT[s]}, 4096")
            if j == 10: a(f"s_sub_u32 {sT[s]}, {sT[s]}, {sT[9]}")
            a.vmem(f"buffer_load_dwordx4 {vr(A0 + (f % RING)*4)}, {vL16}, {WS}, {sT[s]} offen offset:{(j%4)*KB} sc1", f"a{f}")
        PD = 10
        for f in range(PD): lda(f)
        todo = []
        for f in range(N):
            s, j = divmod(f, nks)
            lda(f + PD)
            a.wait(vm=f"a{f}")
            d0 = OWN if s == 3 else AC + (s % 2) * 16
            for t in range(4):
                d = d0 + t*4
                c = "0" if (j == 0 and s < 3) else vr(d)
                a(f"{MF} {vr(d)}, {ar(wb + j*16 + t*4)}, {vr(A0 + (f % RING)*4)}, {c}")
                if todo: todo.pop(0)()
            if j == 1 and s > 0:
                pd = AC + ((s-1) % 2) * 16
                for t in range(4):
                    todo.append(lambda t=t, pd=pd, s=s: a.lds(f"ds_write_b128 v{vTMP+3+s-1}, {vr(pd + t*4)} offset:{t*KB}", "pw"))
            if s == 3 and j == 2:
                while todo: todo.pop(0)()
                a.wait(lg="all")
                a("s_barrier")
                for i in range(12):
                    todo.append(lambda i=i: a.lds(f"ds_read_b128 {vr(PS + i*4)}, {vPGW} offset:{i*KB}", f"pr{i}"))
        while todo: todo.pop(0)()
        self.stamp(f"p{which}.main")
        a.wait(lg="pr7")
        for i in range(8): a(f"v_pk_add_f32 {vr(PS+2*i, 2)}, {vr(PS+2*i, 2)}, {vr(PS+16+2*i, 2)}")
        a.wait(lg="all")
        for i in range(8): a(f"v_pk_add_f32 {vr(OWN+2*i, 2)}, {vr(OWN+2*i, 2)}, {vr(PS+32+2*i, 2)}")
        for i in range(8): a(f"v_pk_add_f32 {vr(OWN+2*i, 2)}, {vr(OWN+2*i, 2)}, {vr(PS+2*i, 2)}")
        for i in range(8): a(f"v_cvt_pk_bf16_f32 v{XR+i}, v{OWN+2*i}, v{OWN+2*i+1}")
        F = AC
        for i in range(8): a(f"v_mov_b32 v{F+i}, v{XR+i}")
        for p in range(2):
            a(f"v_permlane16_swap_b32 v{F+4*p}, v{F+4*p+2}\nv_permlane16_swap_b32 v{F+4*p+1}, v{F+4*p+3}")
        a(f"s_lshl_b32 {sT[0]}, {sMH}, 2\ns_add_u32 {sT[0]}, {sT[0]}, {sW}")
        if last:
            a(f"v_and_b32 v{vTMP}, 15, {vL}\nv_lshlrev_b32 v{vTMP}, 11, v{vTMP}\nv_lshrrev_b32 v{vTMP+1}, 8, {vXst}\nv_lshl_or_b32 v{vTMP}, v{vTMP+1}, 4, v{vTMP}")
            a(f"s_lshl_b32 {sT[0]}, {sT[0]}, 15\ns_add_u32 {sT[0]}, {sT[0]}, {sROW}\ns_lshl_b32 {sT[1]}, {sNB}, 7\ns_add_u32 {sT[0]}, {sT[0]}, {sT[1]}")
            for p in range(2):
                a.vmem(f"buffer_store_dwordx4 {vr(F+4*p)}, v{vTMP}, {OUT}, {sT[0]} offen offset:{64*p}")
            return
        S = AC + 8
        a(f"v_mov_b32 v{S}, 0\nv_mov_b32 v{S+1}, 0")
        for i in range(8):
            a(f"v_dot2c_f32_bf16 v{S}, v{XR+i}, v{ONES}\nv_dot2c_f32_bf16 v{S+1}, v{XR+i}, v{XR+i}")
        a(f"s_lshl_b32 {sT[1]}, {sT[0]}, 14\ns_lshl_b32 {sT[2]}, {sNB}, 11\ns_add_u32 {sT[1]}, {sT[1]}, {sT[2]}\ns_add_u32 {sT[1]}, {sT[1]}, {sWR}")
        a(f"s_lshl_b32 {sT[3]}, {sT[0]}, 10\ns_lshl_b32 {sT[4]}, {sNB}, 7\ns_add_u32 {sT[3]}, {sT[3]}, {sT[4]}\ns_add_u32 {sT[3]}, {sT[3]}, {sWR}\ns_add_u32 {sT[3]}, {sT[3]}, {O_ST}")
        self.gsum2(S)
        self.store2([f"buffer_store_dwordx4 {vr(F+4*p)}, {vXst}, {WS}, {sT[1]} offen offset:{p*KB}" for p in range(2)]
                    + ["s_mov_b64 exec, 0xffff", f"buffer_store_dwordx2 {vr(S, 2)}, {vL8}, {WS}, {sT[3]} offen", "s_mov_b64 exec, -1"])
        self.stamp(f"p{which}.stored")
        self.flag(sFLB, ph)
        self.stamp(f"p{which}.flag")
        if ph == 4:
            l = a.label("L_nhp")
            a(f"s_cmp_lg_u32 {sT[0]}, 7\ns_cbranch_scc1 {l}")
            a(f"s_add_u32 {sT[1]}, {sT[2]}, {sRB0}\ns_add_u32 {sT[1]}, {sT[1]}, {O_HALO}")
            a(f"s_add_u32 {sT[3]}, {sT[4]}, {sRB0}\ns_add_u32 {sT[3]}, {sT[3]}, {O_HALO + 16*KB}")
            for p in range(2):
                a(f"buffer_store_dwordx4 {vr(F+4*p)}, {vXst}, {WS}, {sT[1]} offen offset:{p*KB} sc1")
            a(f"s_mov_b64 exec, 0xffff\nbuffer_store_dwordx2 {vr(S, 2)}, {vL8}, {WS}, {sT[3]} offen sc1\ns_mov_b64 exec, 1")
            a(f"s_lshl_b32 {sT[1]}, {sNB}, 2\ns_add_u32 {sT[1]}, {sT[1]}, {sRB0}\ns_add_u32 {sT[1]}, {sT[1]}, {O_FL + 256}")
            a(f"v_mov_b32 v{vTMP}, 1\nv_mov_b32 v{vTMP+1}, 0")
            a("s_waitcnt vmcnt(0)")
            a(f"buffer_store_dword v{vTMP}, v{vTMP+1}, {WS}, {sT[1]} offen sc1")
            a(f"s_mov_b64 exec, -1\n{l}:")

    def w1_colsum(self):
        a = self.a
        WF = VB; CA = VB + 96
        a(f"s_lshl_b32 {sT[0]}, {sP0}, 6\nv_lshlrev_b32 v{vTMP}, 1, {vL}")
        a.vmem(f"buffer_load_short_d16_hi v{CA+24}, v{vTMP}, {B1}, {sT[0]} offen", "bias")
        a.vmem(f"buffer_load_short_d16_hi v{CA+25}, v{vTMP}, {B1}, {sT[0]} offen offset:128", "bias")
        a.wait(vm="all")
        a(f"s_mul_i32 {sT[0]}, {sW}, {24*KB}\nv_add_u32 v{vTMP}, {sT[0]}, {vT0}\nv_add_u32 v{vTMP+1}, {sT[0]}, {vT1}")
        for k in range(4):
            for j in range(6):
                for h in range(2):
                    a.lds(f"ds_read_b64_tr_b16 {vr(WF + (k*6+j)*4 + 2*h, 2)}, v{vTMP + j % 2} offset:{self.xblk(k, j // 2, h)}", f"c{k*6+j}")
        for k in range(4):
            for j in range(6):
                a.wait(lg=f"c{k*6+j}")
                a(f"{MF} {vr(CA + j*4)}, {vr(ONES)}, {vr(WF + (k*6+j)*4)}, {'0' if k == 0 else vr(CA + j*4)}")
        a(f"v_and_b32 v{CA+24}, 0xffff0000, v{CA+24}\nv_and_b32 v{CA+25}, 0xffff0000, v{CA+25}")
        a(f"v_lshlrev_b32 v{vTMP+2}, 2, {vL}\nv_add_u32 v{vTMP+2}, {L_BI}, v{vTMP+2}")
        a(f"ds_write2_b32 v{vTMP+2}, v{CA+24}, v{CA+25} offset0:0 offset1:64")
        a(f"s_mul_i32 {sT[0]}, {sW}, 384\ns_add_u32 {sT[0]}, {sT[0]}, {L_CSP}\nv_add_u32 v{vTMP}, {sT[0]}, {vPB}")
        for j in range(0, 6, 2):
            a.lds(f"ds_write2_b32 v{vTMP}, v{CA+j*4}, v{CA+j*4+4} offset0:{j*16} offset1:{j*16+16}")
        a.wait(lg="all")

    def p3(self, ps):
        a = self.a
        ph = ps*4 + 3
        A0 = VB
        ACC = A0 + 64
        WF = ACC + 48
        TT = WF + 32
        ST = TT + 48
        STL = ST + 4
        RING = 8
        areg = lambda ks, T: A0 + ((ks % RING) * 2 + T) * 4
        sA0, sA1 = sT[0], sT[1]
        self.next_arena()
        self.poll(vPB, sPLB, ph - 1)
        self.stamp("p3.polled")
        a(f"s_lshl_b32 {sA0}, {sW}, 15\ns_add_u32 {sA0}, {sA0}, {sRD}\ns_add_u32 {sA1}, {sA0}, {16*KB}")
        a(f"s_lshl_b32 {sT[3]}, {sW}, 11\ns_add_u32 {sT[3]}, {sT[3]}, {sRD}\ns_add_u32 {sT[3]}, {sT[3]}, {O_ST}")
        def lda(ks):
            if ks >= 16: return
            if ks and ks % 4 == 0: a(f"s_add_u32 {sA0}, {sA0}, 4096\ns_add_u32 {sA1}, {sA1}, 4096")
            for T in range(2):
                a.vmem(f"buffer_load_dwordx4 {vr(areg(ks, T))}, {vL16}, {WS}, {(sA0, sA1)[T]} offen offset:{(ks%4)*KB} sc1", f"a{ks}")
        PD = 5
        for ks in range(PD): lda(ks)
        for T in range(2):
            for n in range(2):
                a.vmem(f"buffer_load_dwordx2 {vr(STL + T*4 + n*2, 2)}, {vSTL}, {WS}, {sT[3]} offen offset:{T*KB + n*128} sc1", "stl")
        a("s_barrier")
        if ps == 0:
            a(f"v_lshlrev_b32 v{vTMP+3}, 2, {vL}\nv_add_u32 v{vTMP+3}, {L_CSP}, v{vTMP+3}")
            for w in range(4):
                a.lds(f"ds_read2_b32 {vr(TT + 2*w, 2)}, v{vTMP+3} offset0:{w*96} offset1:{w*96+64}" if w*96+64 < 256 else
                      f"ds_read2_b32 {vr(TT + 2*w, 2)}, v{vTMP+4} offset0:{w*96-192} offset1:{w*96+64-192}", "cp")
                if w == 0: a(f"v_add_u32 v{vTMP+4}, 768, v{vTMP+3}")
            a.wait(lg="all")
            a(f"v_pk_add_f32 {vr(TT, 2)}, {vr(TT, 2)}, {vr(TT+2, 2)}\nv_pk_add_f32 {vr(TT+4, 2)}, {vr(TT+4, 2)}, {vr(TT+6, 2)}")
            a(f"v_pk_add_f32 {vr(TT, 2)}, {vr(TT, 2)}, {vr(TT+4, 2)}")
            a(f"v_add_u32 v{vTMP+3}, {L_CS - L_CSP}, v{vTMP+3}")
            a(f"ds_write_b32 v{vTMP+3}, v{TT}")
            a(f"ds_write_b32 v{vTMP+3}, v{TT+1} offset:256")
            a("s_waitcnt lgkmcnt(0)")
        self.sync_set = set()
        def pre_k(ks):
            lda(ks + PD)
            a.wait(vm=f"a{ks}")
            if ps == 0:
                if ks == 6: self.stage_consume(2); self.stage_issue(3)
                if ks == 15: self.stage_consume(3); self.stage_issue(4)
            return False
        self.wide_gemm(areg, ACC, WF, pre_k, False)
        self.stamp("p3.main")
        a("s_barrier")
        CB = A0
        a(f"v_add_u32 v{vTMP+3}, {L_CS}, {vG16}")
        for j in range(6):
            a.lds(f"ds_read_b128 {vr(CB + j*4)}, v{vTMP+3} offset:{j*64}", "cb")
            a.lds(f"ds_read_b128 {vr(CB + 24 + j*4)}, v{vTMP+3} offset:{512 + j*64}", "cb")
        a.wait(vm="stl")
        for T in range(2):
            a(f"v_pk_add_f32 {vr(ST+2*T, 2)}, {vr(STL+4*T, 2)}, {vr(STL+4*T+2, 2)}")
            self.gsum2(ST + 2*T); self.stats_finish(ST + 2*T)
        a.wait(lg="all")
        a(f"s_mul_i32 {sT[3]}, {sW}, {2*HT}\ns_lshl_b32 {sT[4]}, {sP0}, 10\ns_add_u32 {sT[3]}, {sT[3]}, {sT[4]}")
        a(f"s_add_u32 {sT[3]}, {sT[3]}, {sWR}\ns_add_u32 {sT[3]}, {sT[3]}, {O_H}\ns_add_u32 {sT[4]}, {sT[3]}, {HT}")
        a(f"s_mov_b32 {sT[6]}, {f32(1.4426950408889634)}\ns_mov_b32 {sT[7]}, {f32(1.4426950408889634)}")
        HF = WF
        for T in range(2):
            st = vr(ST + 2*T, 2)
            for p in range(3):
                regs = []
                for t in range(2):
                    j = p*2 + t
                    for q in range(2):
                        regs.append((ACC + (j*2 + T)*4 + 2*q, CB + j*4 + 2*q, CB + 24 + j*4 + 2*q, TT + (t*2 + q)*2 + (p % 2)*16, HF + (T*3 + p)*4 + t*2 + q))
                for (ac, cs, bi, e, o) in regs: a(f"v_pk_fma_f32 {vr(e, 2)}, {vr(cs, 2)}, {st}, {vr(bi, 2)} op_sel:[0,1,0] op_sel_hi:[1,1,1]")
                for (ac, cs, bi, e, o) in regs: a(f"v_pk_fma_f32 {vr(ac, 2)}, {vr(ac, 2)}, {st}, {vr(e, 2)} op_sel_hi:[1,0,1]")
                for (ac, cs, bi, e, o) in regs: a(f"v_pk_mul_f32 {vr(e, 2)}, {vr(ac, 2)}, s[70:71]")
                for (ac, cs, bi, e, o) in regs: a(f"v_exp_f32 v{e}, v{e}\nv_exp_f32 v{e+1}, v{e+1}")
                for (ac, cs, bi, e, o) in regs: a(f"v_pk_fma_f32 {vr(e+8, 2)}, {vr(e, 2)}, 0.5, 1.0 op_sel_hi:[1,0,0]")
                for (ac, cs, bi, e, o) in regs: a(f"v_pk_fma_f32 {vr(e, 2)}, {vr(e, 2)}, {vr(e+8, 2)}, 1.0 op_sel_hi:[1,1,0]")
                for (ac, cs, bi, e, o) in regs: a(f"v_rcp_f32 v{e}, v{e}\nv_rcp_f32 v{e+1}, v{e+1}")
                for (ac, cs, bi, e, o) in regs: a(f"v_pk_fma_f32 {vr(ac, 2)}, {vr(ac, 2)}, {vr(e, 2)}, {vr(ac, 2)} neg_lo:[1,0,0] neg_hi:[1,0,0]")
                for (ac, cs, bi, e, o) in regs: a(f"v_cvt_pk_bf16_f32 v{o}, v{ac}, v{ac+1}")
            self.store2([f"buffer_store_dwordx4 {vr(HF + (T*3 + p)*4)}, {vL16}, {WS}, {sT[3+T]} offen offset:{p*KB}" for p in range(3)])
        self.stamp("p3.stored")
        self.flag(sFLA, ph)
        self.stamp("p3.flag")

    def build(self):
        a = self.a
        self.prologue()
        for ps in range(2):
            self.p1(ps)
            if ps == 0:
                self.stage_consume(0); self.stage_issue(1)
            for j in range(4): self.x_dma_own("1", j, "w1")
            if ps == 0: self.stage_consume(1); a("s_barrier")
            self.narrow(ps, 2)
            if ps == 0:
                self.stage_issue(2)
                self.w1_colsum()
                a.vm = []
            self.p3(ps)
            if ps == 0:
                self.stage_consume(4); a("s_barrier")
                for j in range(4): self.x_dma_own("q", j, "wq")
            self.narrow(ps, 4)
        self.stamp("end")
        if self.c.stamps:
            a(f"s_lshl_b32 {sT[0]}, s2, 2\ns_add_u32 {sT[0]}, {sT[0]}, {sW}\ns_lshl_b32 {sT[0]}, {sT[0]}, 8\ns_add_u32 {sT[0]}, {sT[0]}, {O_STAMP}")
            a(f"v_lshlrev_b32 v{vTMP}, 2, {vL}")
            a(f"buffer_store_dword {vSTAMP}, v{vTMP}, {WS}, {sT[0]} offen")
        a("L_end:\ns_endpgm")
        head = open("cdna_kernels/" + NAME + ".s.ref").read().split("; Override launch")[0]
        head += f"; @launch grid=(256,1,1) block=(256,1,1) lds={LDS_BYTES}\n"
        head += f'.amdgcn_target "amdgcn-amd-amdhsa--gfx950"\n.text\n.globl {NAME}_kernel\n.p2align 8\n.type {NAME}_kernel,@function\n{NAME}_kernel:\n'
        tail = f'''.section .rodata,"a"
.p2align 6
.amdhsa_kernel {NAME}_kernel
  .amdhsa_next_free_vgpr 512
  .amdhsa_next_free_sgpr 96
  .amdhsa_accum_offset 256
  .amdhsa_group_segment_fixed_size 0
  .amdhsa_kernarg_size 80
  .amdhsa_user_sgpr_count 2
  .amdhsa_user_sgpr_kernarg_segment_ptr 1
  .amdhsa_system_sgpr_workgroup_id_x 1
  .amdhsa_float_denorm_mode_32 3
.end_amdhsa_kernel
'''
        return head + a.text() + tail

def make(**kw):
    c = Cfg()
    for k, v in kw.items(): setattr(c, k, v)
    g = Gen(c)
    return g.build(), g

if __name__ == "__main__":
    out = sys.argv[1] if len(sys.argv) > 1 else "cdna_kernels/" + NAME + ".s"
    txt, g = make()
    open(out, "w").write(txt)
    print("instructions:", len(g.a.ins), "padded wait states:", g.a.padded)
```

```python
import sys, struct
from asmlib import Asm

NAME = "interleave_layers__sliding_local_dilated__dense_activation_mish__prompt"
KB = 1024

def f32(x): return "0x%08x" % struct.unpack("<I", struct.pack("<f", x))[0]

class Cfg:
    stamps = False
    force_slow = False
    dbgstamps = False
    spin_max = 1 << 17

X0, WQKV, WO, W1, B1, W2, OUT, DBG, WS = [f"s[{8+4*i}:{11+4*i}]" for i in range(9)]
sW, sR, sC, sMH, sNB = "s44", "s45", "s46", "s47", "s48"
sRB0   = "s49"
sRD, sWR, sSTEP = "s50", "s51", "s52"
sSLOW  = "s53"
sFLA   = "s54"
sFLB   = "s55"
sPLA   = "s56"
sPLB   = "s57"
sROW   = "s58"
sP0    = "s59"
sCEN   = "s60"
sPAGE  = "s61"
sHAS   = "s62"
sT = [f"s{64+i}" for i in range(24)]
sSTMP = "s[90:91]"; sSPIN = "s92"

O_X, O_ST, O_FL, O_HALO, O_H = 0, 128*KB, 136*KB, 140*KB, 160*KB
HT = 44*KB
ARENA = 8 << 20
WS_SIZE = 80 << 20
O_STAMP = 72 << 20

L_X, L_Z, L_M = 0, 96*KB, 144*KB
PAGE = 12*KB
L_KV = L_M
L_STT = L_M + 8*KB
L_CSP = L_M + 10*KB
L_CS = L_M + 12*KB
L_BI = L_M + 12*KB + 512
LDS_BYTES = 160*KB

vL, vL16, vT0, vT1, vT0h, vT1h, vZ0, vZ1 = [f"v{i}" for i in range(8)]
vDQ, vD1, vDP, vXst, vPA, vPB, vSTL, vG16 = [f"v{i}" for i in range(8, 16)]
ONES = 16
XR = 20
vCSV = 28
vL8, vSTAMP = "v30", "v31"
vPGW = "v32"
vTH = "v33"
vTMP = 34
VB = 40

def vr(b, n=4): return f"v[{b}:{b+n-1}]"
def ar(b, n=4): return f"a[{b}:{b+n-1}]"
MF = "v_mfma_f32_16x16x32_bf16"
MF16 = "v_mfma_f32_16x16x16_bf16"

class Gen:
    def __init__(self, cfg):
        self.c = cfg
        self.a = Asm()
        self.nst = 0
        self.stn = []

    def stamp(self, name):
        if self.c.dbgstamps and name in ("start", "p1.main", "p1.flag", "p2.flag", "p3.flag", "p4.flag", "end"):
            slot = [2, 3, 6, 7, 10, 11, 14, 15, 18, 19, 22, 23][self.nst]
            if name == "end": slot = 15
            if self.nst < 6 or name == "end":
                self.a.wait(lg="all")
                self.a(f"s_memrealtime {sSTMP}\ns_waitcnt lgkmcnt(0)\nv_writelane_b32 {vSTAMP}, s90, {slot}")
            self.nst += 1
        if not self.c.stamps: return
        a = self.a
        a.wait(lg="all")
        a(f"s_memtime {sSTMP}\ns_waitcnt lgkmcnt(0)\nv_writelane_b32 {vSTAMP}, s90, {self.nst}")
        self.stn.append(name); self.nst += 1

    def dma(self, srd, voff, soff, ldsbase, imm=0, tag="dma"):
        a = self.a
        if isinstance(ldsbase, tuple):
            a(f"s_add_u32 m0, {ldsbase[0]}, {ldsbase[1] - imm}")
        else:
            assert ldsbase - imm >= 0
            a(f"s_mov_b32 m0, {ldsbase - imm}")
        a.vmem(f"buffer_load_dwordx4 {voff}, {srd}, {soff} offen offset:{imm} lds", tag)

    def store2(self, items):
        a = self.a
        ls, le = a.label("L_slow"), a.label("L_st")
        a(f"s_cmp_lg_u32 {sSLOW}, 0\ns_cbranch_scc1 {ls}")
        for t in items: a(t)
        a(f"s_branch {le}\n{ls}:")
        a("s_nop 1")
        for t in items:
            a(t + " sc1" if t.startswith("buffer_") else t)
        a(f"{le}:")
        a("s_nop 1")
        for t in items:
            if t.startswith("buffer_"): a.vm.append("st")

    def flag(self, saddr, val):
        a = self.a
        a.wait(vm="all")
        a(f"v_mov_b32 v{vTMP}, {val}\nv_mov_b32 v{vTMP+1}, 0")
        a("s_mov_b64 exec, 1")
        self.store2([f"buffer_store_dword v{vTMP}, v{vTMP+1}, {WS}, {saddr} offen"])
        a("s_mov_b64 exec, -1")

    def poll(self, voff, sline, val):
        a = self.a
        lp, ld = a.label("L_poll"), a.label("L_got")
        a(f"s_mov_b32 {sSPIN}, 0")
        a(f"{lp}:")
        a(f"buffer_load_dword v{vTMP+2}, {voff}, {WS}, {sline} offen sc1")
        a("s_waitcnt vmcnt(0)")
        a(f"v_cmp_gt_u32 vcc, {val}, v{vTMP+2}")
        a(f"s_cbranch_vccz {ld}")
        a(f"s_add_u32 {sSPIN}, {sSPIN}, 1\ns_cmp_lt_u32 {sSPIN}, {self.c.spin_max}\ns_cbranch_scc1 {lp}")
        a(f"{ld}:")
        a.vm = []

    def next_arena(self):
        self.a(f"s_mov_b32 {sRD}, {sWR}\ns_add_u32 {sWR}, {sWR}, {sSTEP}")

    def trX(self, dst, blk, t, tag):
        if blk < 65536: v = (vT0, vT1)[t]; off = blk
        else: v = (vT0h, vT1h)[t]; off = blk - 65536
        self.a.lds(f"ds_read_b64_tr_b16 {dst}, {v} offset:{off}", tag)

    @staticmethod
    def xblk(ks, p, h): return L_X + ((ks * 2 + h) * 3 + p) * KB

    def dma_x(self, which, ks, h, stmp):
        raise NotImplementedError

    def stage_issue(self, rnd):
        a = self.a
        for j in range(3):
            idx = rnd * 3 + j
            if idx < 4:
                srd = WO
                a(f"s_lshl_b32 {sT[20]}, {sW}, 2\ns_add_u32 {sT[20]}, {sT[20]}, {idx}")
            else:
                srd = W2
                a(f"s_mul_i32 {sT[20]}, {sW}, 11\ns_add_u32 {sT[20]}, {sT[20]}, {idx-4}\ns_min_u32 {sT[20]}, {sT[20]}, 42")
            a(f"s_lshl_b32 {sT[20]}, {sT[20]}, 15\ns_lshl_b32 {sT[21]}, {sNB}, 7\ns_add_u32 {sT[20]}, {sT[20]}, {sT[21]}")
            for h in range(2):
                if h: a(f"s_add_u32 {sT[20]}, {sT[20]}, {16*KB}")
                for p in range(2):
                    self.dma(srd, vDP, sT[20], (sPAGE, (j*4 + h*2 + p) * KB), imm=p*64, tag=f"stage{rnd}")

    def stage_reads(self, rnd):
        out = []
        for j in range(3):
            idx = rnd * 3 + j
            for h in range(2):
                for p in range(2):
                    for t in range(2):
                        base = idx * 16 + (p*2 + t) * 4 + h * 2
                        out.append(f"ds_read_b64_tr_b16 {ar(base, 2)}, {(vZ0, vZ1)[t]} offset:{(j*4 + h*2 + p) * KB}")
        return out

    def stage_consume(self, rnd):
        a = self.a
        a.wait(vm=f"stage{rnd}")
        for t in self.stage_reads(rnd): a.lds(t, "stg")
        a.wait(lg="all")
        if rnd == 4:
            l = a.label("L_z")
            a(f"s_cmp_lg_u32 {sW}, 3\ns_cbranch_scc1 {l}")
            for i in range(16): a(f"v_accvgpr_write_b32 a{14*16+i}, 0")
            a(f"{l}:\ns_nop 1")

    def wq_dma(self, ks_list):
        raise NotImplementedError

    def x_dma_group(self, which, g4, tag):
        a = self.a
        stride = 3072 if which == "q" else 2752
        srd, voff = (WQKV, vDQ) if which == "q" else (W1, vD1)
        s, m = sT[20], sT[21]
        a(f"s_add_u32 {s}, {sW}, {4*g4}\ns_mul_i32 {m}, {s}, {6*KB}\ns_mul_i32 {s}, {s}, {32*stride}")
        a(f"s_lshl_b32 {sT[22]}, {sC if which == 'q' else sP0}, 6\ns_add_u32 {s}, {s}, {sT[22]}")
        for h in range(2):
            if h: a(f"s_add_u32 {s}, {s}, {4*stride}")
            for p in range(3):
                imm = p * (1024 if which == "q" else 64)
                self.dma(srd, voff, s, (m, L_X + (h*3 + p) * KB), imm=imm, tag=tag)

    def x_dma_own(self, which, j, tag):
        a = self.a
        stride = 3072 if which == "q" else 2752
        srd, voff = (WQKV, vDQ) if which == "q" else (W1, vD1)
        s, m = sT[20], sT[21]
        a(f"s_lshl_b32 {s}, {sW}, 2\ns_add_u32 {s}, {s}, {j}\ns_mul_i32 {m}, {s}, {6*KB}\ns_mul_i32 {s}, {s}, {32*stride}")
        a(f"s_lshl_b32 {sT[22]}, {sC if which == 'q' else sP0}, 6\ns_add_u32 {s}, {s}, {sT[22]}")
        for h in range(2):
            if h: a(f"s_add_u32 {s}, {s}, {4*stride}")
            for p in range(3):
                imm = p * (1024 if which == "q" else 64)
                self.dma(srd, voff, s, (m, L_X + (h*3 + p) * KB), imm=imm, tag=tag)

    def stats_finish(self, b):
        a = self.a
        t = vTMP
        a(f"v_mul_f32 v{b}, {f32(1/512)}, v{b}")
        a(f"v_mul_f32 v{t}, v{b}, v{b}")
        a(f"v_fma_f32 v{b+1}, v{b+1}, {sT[23]}, -v{t}")
        a(f"v_max_f32 v{b+1}, 0, v{b+1}")
        a(f"v_add_f32 v{b+1}, {f32(1e-5)}, v{b+1}")
        a(f"v_rsq_f32 v{t}, v{b+1}")
        a(f"v_mul_f32 v{b+1}, v{b}, v{t}")
        a(f"v_mov_b32 v{b}, v{t}")
        a(f"v_sub_f32 v{b+1}, 0, v{b+1}")

    def gsum2(self, b):
        a = self.a
        t = vTMP
        a(f"v_permlane16_swap_b32 v{b}, v{b+1}")
        a(f"v_add_f32 v{b}, v{b}, v{b+1}")
        a(f"v_mov_b32 v{t}, v{b}")
        a(f"v_permlane32_swap_b32 v{b}, v{t}")
        a(f"v_add_f32 v{b}, v{b}, v{t}")
        a(f"v_mov_b32 v{b+1}, v{b}")
        a(f"v_permlane16_swap_b32 v{b}, v{b+1}")

    def prologue(self):
        a = self.a
        a("s_cmp_ge_u32 s2, 256\ns_cbranch_scc1 L_end")
        for srd, off in ((8, 0), (12, 8), (16, 16), (20, 32), (24, 40), (28, 48), (32, 56), (36, 64), (40, 72)):
            a(f"s_load_dwordx2 s[{srd}:{srd+1}], s[0:1], {off}")
        sizes = {8: 2048*1024, 12: 512*3072, 16: 512*1024, 20: 512*2752, 24: 2752, 28: 1376*1024, 32: 2048*1024, 36: 256, 40: WS_SIZE}
        for srd, n in sizes.items():
            a(f"s_mov_b32 s{srd+2}, {n}\ns_mov_b32 s{srd+3}, 0x20000")
        a(f"v_lshrrev_b32 v1, 6, v0\nv_and_b32 v0, 63, v0\nv_readfirstlane_b32 {sW}, v1")
        if self.c.stamps or self.c.dbgstamps: a(f"v_mov_b32 {vSTAMP}, 0")
        a(f"s_and_b32 {sR}, s2, 7\ns_lshl_b32 {sR}, {sR}, 1\ns_bfe_u32 {sT[0]}, s2, 0x10003\ns_add_u32 {sR}, {sR}, {sT[0]}")
        a(f"s_lshr_b32 {sC}, s2, 4\ns_lshr_b32 {sMH}, {sC}, 3\ns_and_b32 {sNB}, {sC}, 7")
        a(f"s_lshl_b32 {sRB0}, {sR}, 19")
        a(f"s_and_b32 {sT[0]}, {sR}, 7\ns_lshl_b32 {sROW}, {sT[0]}, 8\ns_lshr_b32 {sT[1]}, {sR}, 3\ns_add_u32 {sROW}, {sROW}, {sT[1]}\ns_lshl_b32 {sROW}, {sROW}, 10")
        a(f"s_cmp_lg_u32 {sT[0]}, 0\ns_cselect_b32 {sHAS}, 1, 0")
        a(f"s_lshr_b32 {sT[0]}, {sC}, 2\ns_and_b32 {sT[1]}, {sC}, 3\ns_mul_i32 {sT[1]}, {sT[1]}, 3")
        a(f"s_cmp_eq_u32 {sT[0]}, 3\ns_cselect_b32 {sT[2]}, 7, 8\ns_min_u32 {sT[1]}, {sT[1]}, {sT[2]}")
        a(f"s_mul_i32 {sP0}, {sT[0]}, 11\ns_add_u32 {sP0}, {sP0}, {sT[1]}")
        a(f"s_add_u32 {sT[0]}, {sRB0}, {O_FL}")
        a(f"s_lshl_b32 {sT[1]}, {sW}, 6\ns_add_u32 {sPLB}, {sT[0]}, {sT[1]}")
        a(f"s_lshl_b32 {sT[1]}, {sC}, 2\ns_add_u32 {sFLA}, {sPLB}, {sT[1]}")
        a(f"s_lshl_b32 {sT[1]}, {sMH}, 7\ns_add_u32 {sT[0]}, {sT[0]}, {sT[1]}")
        a(f"s_lshl_b32 {sT[1]}, {sW}, 4\ns_add_u32 {sPLA}, {sT[0]}, {sT[1]}")
        a(f"s_lshl_b32 {sT[1]}, {sW}, 3\ns_add_u32 {sT[1]}, {sT[1]}, {sNB}\ns_lshl_b32 {sT[1]}, {sT[1]}, 2\ns_add_u32 {sFLB}, {sT[0]}, {sT[1]}")
        a(f"s_mul_i32 {sPAGE}, {sW}, {PAGE}\ns_add_u32 {sPAGE}, {sPAGE}, {L_Z}")
        a(f"s_getreg_b32 {sT[0]}, hwreg(HW_REG_XCC_ID)\ns_and_b32 {sT[0]}, {sT[0]}, 15")
        a(f"s_mul_i32 {sT[1]}, {sT[0]}, {sT[0]}\ns_lshl_b32 {sT[1]}, {sT[1]}, 16\ns_lshl_b32 {sT[0]}, {sT[0]}, 8")
        a(f"s_add_u32 {sCEN}, {sT[0]}, {sT[1]}\ns_add_u32 {sCEN}, {sCEN}, 1")
        a(f"s_mov_b32 {sT[23]}, {f32(1/512)}")
        t0, t1, t2, t3 = [f"v{vTMP+i}" for i in range(4)]
        a(f"v_lshlrev_b32 {vL16}, 4, {vL}\nv_lshlrev_b32 {vL8}, 3, {vL}")
        a(f"v_and_b32 {t0}, 15, {vL}\nv_lshrrev_b32 {t1}, 4, {vL}")
        a(f"v_lshlrev_b32 {vG16}, 4, {t1}")
        a(f"v_lshrrev_b32 {t2}, 2, {vL}\nv_lshlrev_b32 {vT0}, 6, {t2}")
        a(f"v_and_b32 {t3}, 1, {t1}\nv_lshl_or_b32 {vT0}, {t3}, 5, {vT0}")
        a(f"v_and_b32 {t3}, 3, {vL}\nv_lshl_or_b32 {vT0}, {t3}, 3, {vT0}")
        a(f"v_xor_b32 {vT1}, 32, {vT0}\nv_add_u32 {vT0h}, 0x10000, {vT0}\nv_add_u32 {vT1h}, 0x10000, {vT1}")
        a(f"v_add_u32 {vZ0}, {sPAGE}, {vT0}\nv_add_u32 {vZ1}, {sPAGE}, {vT1}\nv_add_u32 {vPGW}, {sPAGE}, {vL16}")
        a(f"v_and_b32 {vDP}, 1, {t1}\nv_lshlrev_b32 {vDP}, 1, {vDP}\nv_xor_b32 {t3}, {vDP}, {t3}\nv_lshlrev_b32 {t3}, 4, {t3}")
        a(f"v_lshl_or_b32 {vDP}, {t2}, 10, {t3}")
        a(f"v_and_b32 {t2}, 3, {t2}\nv_lshl_or_b32 {t2}, {t1}, 3, {t2}")
        a(f"v_mul_u32_u24 {vDQ}, 3072, {t2}\nv_add_u32 {vDQ}, {vDQ}, {t3}")
        a(f"v_mul_u32_u24 {vD1}, 2752, {t2}\nv_add_u32 {vD1}, {vD1}, {t3}")
        a(f"v_and_b32 {t2}, 1, {t1}\nv_lshlrev_b32 {t2}, 1, {t2}\nv_lshrrev_b32 {t3}, 1, {t1}\nv_or_b32 {t2}, {t2}, {t3}")
        a(f"v_lshl_or_b32 {vXst}, {t2}, 4, {t0}\nv_lshlrev_b32 {vXst}, 4, {vXst}")
        a(f"v_bfe_u32 {t2}, {vL}, 2, 1\nv_and_b32 {t3}, 3, {vL}\nv_lshlrev_b32 {t3}, 2, {t3}\nv_lshl_or_b32 {vPA}, {t2}, 6, {t3}")
        a(f"v_lshlrev_b32 {vPB}, 2, {t0}")
        a(f"v_lshlrev_b32 {vSTL}, 3, {t0}\nv_lshl_or_b32 {vSTL}, {t1}, 8, {vSTL}")
        for i in range(4): a(f"v_mov_b32 v{ONES+i}, 0x3f803f80")
        a(f"s_and_b32 {sT[0]}, {sW}, 1\ns_lshl_b32 {sT[0]}, {sT[0]}, 5\nv_xor_b32 {vTH}, {sT[0]}, {vT0}")
        a(f"s_lshr_b32 {sT[0]}, {sW}, 1\ns_add_u32 {sT[0]}, {sT[0]}, 1\ns_lshl_b32 {sT[0]}, {sT[0]}, 10\nv_add_u32 {vTH}, {sT[0]}, {vTH}")
        a("s_waitcnt lgkmcnt(0)")
        if self.c.stamps: a(f"s_memrealtime {sSTMP}\ns_waitcnt lgkmcnt(0)\nv_writelane_b32 {vSTAMP}, s90, 62")
        self.stamp("start")

    def wide_gemm(self, areg, acc, wf, pre_k, swapV, extra_mfma=None, fill=None):
        a = self.a
        LA = 5
        def rd(f):
            if f >= 96: return
            ks, j = divmod(f, 6)
            s = wf + (f % 8) * 4
            for h in range(2):
                self.trX(vr(s + 2*h, 2), self.xblk(ks, j // 2, h), j % 2, f"w{f}")
        started = False
        for ks in range(16):
            sync = pre_k(ks)
            if sync or not started:
                for f in range(ks*6, ks*6 + LA): rd(f)
                started = True
            for j in range(6):
                f = ks * 6 + j
                s = wf + (f % 8) * 4
                nf = f + LA
                ok = nf < 96 and not self.sync_at(nf // 6, ks)
                a.wait(lg=f"w{f}")
                for T in range(2):
                    d = acc + (j*2 + T) * 4
                    c = "0" if ks == 0 else vr(d)
                    if swapV and j >= 4: a(f"{MF} {vr(d)}, {vr(areg(ks, T))}, {vr(s)}, {c}")
                    else: a(f"{MF} {vr(d)}, {vr(s)}, {vr(areg(ks, T))}, {c}")
                    if ok:
                        k2, j2 = divmod(nf, 6)
                        self.trX(vr(wf + (nf % 8)*4 + 2*T, 2), self.xblk(k2, j2 // 2, T), j2 % 2, f"w{nf}")
                if extra_mfma: extra_mfma(ks, j, s)
                if fill and f in fill:
                    for fn in fill[f]: fn()

    def sync_at(self, ks_next, ks_cur):
        return ks_next != ks_cur and ks_next in self.sync_set

    def p1(self, ps):
        a = self.a
        A0 = VB
        ACC = A0 + 96
        WF = ACC + 48
        ST = WF + 32
        HA = ST + 6
        R = HA + 4
        RING = 12
        areg = lambda ks, T: A0 + ((ks % RING) * 2 + T) * 4
        hreg = lambda ks: A0 + 32 + ks * 4
        vXrow, vXh = f"v{R}", f"v{R+1}"
        sA0, sA1, sH = sT[0], sT[1], sT[2]
        STL = R + 2
        if ps == 0:
            a(f"v_and_b32 {vXrow}, 15, {vL}\nv_lshlrev_b32 {vXrow}, 11, {vXrow}\nv_add_u32 {vXrow}, {vXrow}, {vG16}")
            a(f"s_lshl_b32 {sA0}, {sW}, 16\ns_add_u32 {sA0}, {sA0}, {sROW}\ns_add_u32 {sA1}, {sA0}, {32*KB}")
            a(f"s_cmp_lg_u32 {sHAS}, 0\ns_cselect_b32 {sT[3]}, 0, 0x40000000\ns_cselect_b32 {sH}, {32*KB}, 0\ns_sub_u32 {sH}, {sROW}, {sH}")
            a(f"v_add_u32 {vXh}, {sT[3]}, {vXrow}")
            def lda(ks, T): a.vmem(f"buffer_load_dwordx4 {vr(areg(ks, T))}, {vXrow}, {X0}, {(sA0, sA1)[T]} offen offset:{ks*64}", f"a{ks}")
            def ldh(ks): a.vmem(f"buffer_load_dwordx4 {vr(hreg(ks))}, {vXh}, {X0}, {sH} offen offset:{ks*64}", f"h{ks}")
            def grp(g4, w=True, x=True):
                if w: self.x_dma_group("q", g4, f"g{g4}")
                if x:
                    for k2 in range(2):
                        for T in range(2):
                            for ks in (4*g4 + 2*k2, 4*g4 + 2*k2 + 1): lda(ks, T)
                    a.vm[-1] = f"g{g4}" if not w or True else a.vm[-1]
            l = a.label("L_nz")
            a(f"s_or_b32 {sT[3]}, {sC}, {sW}\ns_cmp_lg_u32 {sT[3]}, 0\ns_cbranch_scc1 {l}")
            a(f"v_mov_b32 v{vTMP}, 0\nv_mov_b32 v{vTMP+1}, 0\ns_add_u32 {sT[3]}, {sRB0}, {O_FL}")
            a(f"buffer_store_dwordx2 {vr(vTMP, 2)}, {vL8}, {WS}, {sT[3]} offen sc1")
            a(f"{l}:")
            grp(0); grp(1)
            l = a.label("L_nc")
            a(f"s_cmp_lg_u32 {sW}, 0\ns_cbranch_scc1 {l}")
            a(f"v_mov_b32 v{vTMP+2}, {sCEN}\nv_mov_b32 v{vTMP+3}, 0\ns_lshl_b32 {sT[3]}, {sR}, 4\ns_mov_b64 exec, 1")
            a(f"buffer_atomic_add v{vTMP+2}, v{vTMP+3}, {DBG}, {sT[3]} offen sc1")
            a(f"s_mov_b64 exec, -1\n{l}:")
            grp(2); grp(3, x=False)
            for i in range(6): a(f"v_mov_b32 v{ST+i}, 0")
            self.sync_set = {4, 8, 12}
            def pre_k(ks):
                if ks % 4: return False
                g4 = ks // 4
                self.stamp(f"g{g4}.pre")
                a.wait(vm=f"g{g4}")
                self.stamp(f"g{g4}.wait")
                a("s_barrier")
                self.stamp(f"g{g4}.bar")
                if g4 == 0:
                    l = a.label("L_nl")
                    a(f"s_or_b32 {sT[3]}, {sC}, {sW}\ns_cmp_lg_u32 {sT[3]}, 0\ns_cbranch_scc1 {l}")
                    a(f"v_mov_b32 v{vTMP+2}, 1\nv_mov_b32 v{vTMP+3}, 4\ns_lshl_b32 {sT[3]}, {sR}, 4\ns_mov_b64 exec, 1")
                    a(f"buffer_atomic_add v{vTMP+2}, v{vTMP+3}, {DBG}, {sT[3]} offen sc1")
                    a(f"s_mov_b64 exec, -1\n{l}:")
                if g4 == 1:
                    grp(3, w=False)
                    a(f"v_lshrrev_b32 v{vTMP}, 1, {vG16}\nv_sub_u32 v{vTMP}, {vXrow}, v{vTMP}")
                    a(f"s_lshl_b32 {sT[3]}, {sMH}, 2\ns_add_u32 {sT[3]}, {sT[3]}, {sW}\ns_lshl_b32 {sT[3]}, {sT[3]}, 15\ns_add_u32 {sT[3]}, {sT[3]}, {sROW}")
                    a(f"s_lshl_b32 {sT[4]}, {sNB}, 7\ns_add_u32 {sT[3]}, {sT[3]}, {sT[4]}")
                    for t in range(4):
                        a.vmem(f"buffer_load_dwordx2 {vr(XR+2*t, 2)}, v{vTMP}, {X0}, {sT[3]} offen offset:{32*t}", "xr")
                if g4 == 3:
                    for k in range(16): ldh(k)
                    self.stage_issue(0)
                return True
            def extra(ks, j, s):
                d = (240 + j*4) if j < 4 else (232 + (j-4)*4)
                c = "0" if ks == 0 else ar(d)
                if j < 4: a(f"{MF} {ar(d)}, {vr(s)}, {vr(ONES)}, {c}")
                else: a(f"{MF} {ar(d)}, {vr(ONES)}, {vr(s)}, {c}")
                if j < 4:
                    for T in range(2):
                        r = areg(ks, T) + j
                        a(f"v_dot2c_f32_bf16 v{ST+2*T}, v{r}, v{ONES}")
                        a(f"v_dot2c_f32_bf16 v{ST+2*T+1}, v{r}, v{r}")
            self.wide_gemm(areg, ACC, WF, pre_k, True, extra_mfma=extra)
        else:
            self.next_arena()
            self.poll(vPB, sPLB, 4)
            self.stamp("p1.polled")
            a(f"s_lshl_b32 {sA0}, {sW}, 15\ns_add_u32 {sA0}, {sA0}, {sRD}\ns_add_u32 {sA1}, {sA0}, {16*KB}")
            a(f"s_lshl_b32 {sT[3]}, {sW}, 11\ns_add_u32 {sT[3]}, {sT[3]}, {sRD}\ns_add_u32 {sT[3]}, {sT[3]}, {O_ST}")
            def lda(ks):
                if ks >= 16: return
                if ks and ks % 4 == 0: a(f"s_add_u32 {sA0}, {sA0}, 4096\ns_add_u32 {sA1}, {sA1}, 4096")
                for T in range(2):
                    a.vmem(f"buffer_load_dwordx4 {vr(areg(ks, T))}, {vL16}, {WS}, {(sA0, sA1)[T]} offen offset:{(ks%4)*KB} sc1", f"a{ks}")
            PD = 5
            for ks in range(PD): lda(ks)
            for T in range(2):
                for n in range(2):
                    a.vmem(f"buffer_load_dwordx2 {vr(STL + T*4 + n*2, 2)}, {vSTL}, {WS}, {sT[3]} offen offset:{T*KB + n*128} sc1", "stl")
            a("s_barrier")
            self.sync_set = set()
            def pre_k(ks):
                lda(ks + PD)
                a.wait(vm=f"a{ks}")
                if ks == 12:
                    l = a.label("L_nh")
                    a.wait(vm="all")
                    a(f"s_cmp_eq_u32 {sHAS}, 0\ns_cbranch_scc1 {l}")
                    a(f"s_sub_u32 {sH}, {sRB0}, {512*KB - O_FL - 256}")
                    a(f"v_and_b32 v{vTMP+3}, 28, {vPB}")
                    self.poll(f"v{vTMP+3}", sH, 1)
                    a(f"{l}:")
                    a(f"s_cmp_lg_u32 {sHAS}, 0\ns_cselect_b32 {sT[3]}, 0, 0x40000000\ns_cselect_b32 {sH}, {512*KB - O_HALO}, 0\ns_sub_u32 {sH}, {sRB0}, {sH}")
                    a(f"v_add_u32 {vXh}, {sT[3]}, {vL16}\nv_add_u32 {vXrow}, {sT[3]}, {vSTL}")
                    for k in range(16):
                        if k and k % 4 == 0: a(f"s_add_u32 {sH}, {sH}, 4096")
                        a.vmem(f"buffer_load_dwordx4 {vr(hreg(k))}, {vXh}, {WS}, {sH} offen offset:{(k%4)*KB} sc1", f"h{k}")
                    a(f"s_add_u32 {sH}, {sH}, 4096")
                    for n in range(2):
                        a.vmem(f"buffer_load_dwordx2 {vr(STL + 8 + n*2, 2)}, {vXrow}, {WS}, {sH} offen offset:{n*128} sc1", "sth")
                return False
            self.wide_gemm(areg, ACC, WF, pre_k, True)
        self.stamp("p1.main")
        def hrd(k):
            for h in range(2):
                off = (k*2 + h) * 3 * KB
                if off >= 65536 - 2*KB:
                    pass
                a.lds(f"ds_read_b64_tr_b16 {vr(WF + (k%8)*4 + 2*h, 2)}, {vTH if off < 60*KB else 'v%d' % (vTMP+4)} offset:{off if off < 60*KB else off - 60*KB}", f"hw{k}")
        a(f"v_add_u32 v{vTMP+4}, {60*KB}, {vTH}")
        HB = R + 14
        for k in range(6): hrd(k)
        for k in range(16):
            a.wait(vm=f"h{k}", lg=f"hw{k}")
            s = WF + (k % 8) * 4
            a(f"{MF} {vr(HA)}, {vr(s)}, {vr(hreg(k))}, {'0' if k == 0 else vr(HA)}")
            a(f"{MF} {vr(HB)}, {vr(hreg(k))}, {vr(s)}, {'0' if k == 0 else vr(HB)}")
            if k + 6 < 16: hrd(k + 6)
            if ps == 0:
                for j in range(4):
                    a(f"v_dot2c_f32_bf16 v{ST+4}, v{hreg(k)+j}, v{ONES}")
                    a(f"v_dot2c_f32_bf16 v{ST+5}, v{hreg(k)+j}, v{hreg(k)+j}")
        self.stamp("p1.halo")
        if ps == 1:
            a.wait(vm="sth")
            for T in range(3):
                a(f"v_pk_add_f32 {vr(ST+2*T, 2)}, {vr(STL+4*T, 2)}, {vr(STL+4*T+2, 2)}")
        for T in range(3):
            self.gsum2(ST + 2*T); self.stats_finish(ST + 2*T)
        a(f"s_lshl_b32 {sT[3]}, {sW}, 9\ns_add_u32 {sT[3]}, {sT[3]}, {L_STT}")
        a(f"v_add_u32 v{vTMP}, {sT[3]}, {vPB}\nv_add_u32 v{vTMP+1}, {sT[3]}, {vG16}")
        for T in range(3):
            a.lds(f"ds_write2_b32 v{vTMP}, v{ST+2*T}, v{ST+2*T+1} offset0:{T*32} offset1:{T*32+16}", "stw")
        TS = A0
        for T in range(3):
            a.lds(f"ds_read_b128 {vr(TS+8*T)}, v{vTMP+1} offset:{T*128}", "tsr")
            a.lds(f"ds_read_b128 {vr(TS+8*T+4)}, v{vTMP+1} offset:{T*128+64}", "tsr")
        CS = A0 + 24
        for i in range(16): a(f"v_accvgpr_read_b32 v{CS+i}, a{240+i}")
        if ps == 0:
            a(f"v_accvgpr_read_b32 v{vCSV}, a232\nv_accvgpr_read_b32 v{vCSV+1}, a236")
        QP = A0 + 40
        KP = A0 + 48
        VP = A0 + 60
        U = A0 + 72
        def fixT(acc, cs, st, dst, u):
            for p in range(2):
                a(f"v_pk_mul_f32 {vr(u+2*p, 2)}, {vr(cs+2*p, 2)}, {vr(st, 2)} op_sel:[0,1] op_sel_hi:[1,1]")
            for p in range(2):
                a(f"v_pk_fma_f32 {vr(u+2*p, 2)}, {vr(acc+2*p, 2)}, {vr(st, 2)}, {vr(u+2*p, 2)} op_sel_hi:[1,0,1]")
            for p in range(2):
                a(f"v_cvt_pk_bf16_f32 v{dst+p}, v{u+2*p}, v{u+2*p+1}")
        def fixV(acc, h, ts, dst, u, csreg=None):
            sel = f"op_sel:[0,{h}] op_sel_hi:[1,{h}]"
            for p in range(2):
                a(f"v_pk_mul_f32 {vr(u+2*p, 2)}, {vr(ts+4+2*p, 2)}, {vr(csreg or vCSV, 2)} {sel}")
            for p in range(2):
                a(f"v_pk_fma_f32 {vr(u+2*p, 2)}, {vr(acc+2*p, 2)}, {vr(ts+2*p, 2)}, {vr(u+2*p, 2)}")
            for p in range(2):
                a(f"v_cvt_pk_bf16_f32 v{dst+p}, v{u+2*p}, v{u+2*p+1}")
        acc = lambda j, T: ACC + (j*2 + T) * 4
        for h in range(2): fixT(acc(2+h, 1), CS + (2+h)*4, ST + 2, KP + h*6 + 4, U + 4*h)
        a.wait(lg="tsr")
        for h in range(2): fixV(acc(4+h, 1), h, TS + 8, VP + h*6 + 4, U + 4*h)
        a(f"s_add_u32 {sT[3]}, {sW}, 1\ns_lshl_b32 {sT[3]}, {sT[3]}, 11\ns_add_u32 {sT[3]}, {sT[3]}, {L_KV}\nv_add_u32 v{vTMP}, {sT[3]}, {vL8}")
        l = a.label("L_nx")
        a(f"s_cmp_eq_u32 {sW}, 3\ns_cbranch_scc1 {l}")
        for h in range(2):
            a(f"ds_write_b64 v{vTMP}, {vr(KP + h*6 + 4, 2)} offset:{h*512}")
            a(f"ds_write_b64 v{vTMP}, {vr(VP + h*6 + 4, 2)} offset:{1024 + h*512}")
        a(f"{l}:")
        lv, le = a.label("L_hv"), a.label("L_he")
        HP = U + 8
        a(f"s_cmp_ge_u32 {sW}, 2\ns_cbranch_scc1 {lv}")
        a(f"s_cmp_eq_u32 {sW}, 0\ns_cselect_b64 vcc, -1, 0")
        for i in range(4): a(f"v_cndmask_b32 v{HP+2+i}, v{CS+12+i}, v{CS+8+i}, vcc")
        fixT(HA, HP + 2, ST + 4, HP, U)
        a(f"s_branch {le}\n{lv}:\ns_nop 1")
        a(f"s_cmp_eq_u32 {sW}, 2\ns_cselect_b64 vcc, -1, 0")
        a(f"v_cndmask_b32 v{HP+2}, v{vCSV+1}, v{vCSV}, vcc")
        fixV(HB, 0, TS + 16, HP, U, csreg=HP + 2)
        a(f"{le}:")
        a(f"s_lshl_b32 {sT[3]}, {sW}, 9\ns_add_u32 {sT[3]}, {sT[3]}, {L_KV}\nv_add_u32 v{vTMP+1}, {sT[3]}, {vL8}")
        a(f"ds_write_b64 v{vTMP+1}, {vr(HP, 2)}")
        for h in range(2):
            for T in range(2): fixT(acc(h, T), CS + h*4, ST + 2*T, QP + h*4 + T*2, U + 4*T)
        self.stamp("p1.prebar")
        a("s_waitcnt lgkmcnt(0)\ns_barrier"); a.lg = []
        self.stamp("p1.bar")
        a(f"v_subrev_u32 v{vTMP}, 2048, v{vTMP}")
        for h in range(2):
            a.lds(f"ds_read_b64 {vr(KP + h*6, 2)}, v{vTMP} offset:{h*512}", "kvp")
            a.lds(f"ds_read_b64 {vr(VP + h*6, 2)}, v{vTMP} offset:{1024 + h*512}", "kvp")
        for h in range(2): fixT(acc(2+h, 0), CS + (2+h)*4, ST, KP + h*6 + 2, U + 4*h)
        for h in range(2): fixV(acc(4+h, 0), h, TS, VP + h*6 + 2, U + 4*h)
        CM = WF
        a(f"v_lshrrev_b32 v{vTMP+1}, 2, {vG16}\nv_lshrrev_b32 v{vTMP+2}, 2, {vPB}\nv_sub_u32 v{vTMP+1}, v{vTMP+2}, v{vTMP+1}")
        a(f"v_mov_b32 v{vTMP+2}, 0xff800000")
        a(f"s_or_b32 {sT[3]}, {sHAS}, {sW}\ns_cmp_lg_u32 {sT[3]}, 0\ns_cselect_b32 {sT[3]}, 0, 0xff800000")
        for r in range(4):
            a(f"v_subrev_u32 v{vTMP+3}, {r}, v{vTMP+1}")
            a(f"v_cmp_gt_u32 vcc, 8, v{vTMP+3}")
            a(f"v_cndmask_b32 v{CM+r}, v{vTMP+2}, 0, vcc")
            a(f"v_cmp_gt_i32 vcc, -8, v{vTMP+3}")
            a(f"v_cndmask_b32 v{CM+4+r}, v{vTMP+2}, 0, vcc")
            a(f"v_or_b32 v{CM+8+r}, {sT[3]}, v{CM+4+r}")
            a(f"v_ashrrev_i32 v{vTMP+3}, 31, v{vTMP+3}")
            if r % 2 == 0: a(f"v_and_b32 v{CM+12+r//2}, 0xffff, v{vTMP+3}")
            else: a(f"v_and_b32 v{vTMP+3}, 0xffff0000, v{vTMP+3}\nv_or_b32 v{CM+12+r//2}, v{CM+12+r//2}, v{vTMP+3}")
        a.wait(lg="kvp")
        units = [(h, T) for T in range(2) for h in range(2)]
        SC = ACC
        for u, (h, T) in enumerate(units):
            q = vr(QP + h*4 + T*2, 2)
            a(f"{MF16} {vr(SC + u*8)}, {vr(KP + h*6 + 2 + T*2, 2)}, {q}, {vr(CM)}")
            a(f"{MF16} {vr(SC + u*8 + 4)}, {vr(KP + h*6 + T*2, 2)}, {q}, {vr(CM + (8 if T == 0 else 4))}")
        MX = ACC + 32
        for u in range(4):
            for r in range(4): a(f"v_max_f32 v{SC+u*8+r}, v{SC+u*8+r}, v{SC+u*8+4+r}")
            a(f"v_max3_f32 v{MX+u}, v{SC+u*8}, v{SC+u*8+1}, v{SC+u*8+2}")
            a(f"v_max_f32 v{MX+u}, v{MX+u}, v{SC+u*8+3}")
        a(f"v_permlane16_swap_b32 v{MX}, v{MX+1}\nv_permlane16_swap_b32 v{MX+2}, v{MX+3}")
        a(f"v_max_f32 v{MX}, v{MX}, v{MX+1}\nv_max_f32 v{MX+2}, v{MX+2}, v{MX+3}")
        a(f"v_permlane32_swap_b32 v{MX}, v{MX+2}")
        a(f"v_max_f32 v{MX}, v{MX}, v{MX+2}")
        cexp = 0.25 * 1.4426950408889634
        a(f"v_mul_f32 v{MX}, {f32(-cexp)}, v{MX}")
        a(f"v_mov_b32 v{MX+2}, v{MX}")
        a(f"v_permlane32_swap_b32 v{MX}, v{MX+2}")
        a(f"v_mov_b32 v{MX+1}, v{MX}\nv_mov_b32 v{MX+3}, v{MX+2}")
        a(f"v_permlane16_swap_b32 v{MX}, v{MX+1}\nv_permlane16_swap_b32 v{MX+2}, v{MX+3}")
        for u in range(4):
            for r in range(4): a(f"v_fmamk_f32 v{SC+u*8+r}, v{SC+u*8+r}, {f32(cexp)}, v{MX+u}")
        for u in range(4):
            for r in range(4): a(f"v_exp_f32 v{SC+u*8+r}, v{SC+u*8+r}")
        for u in range(4):
            b = SC + u*8
            a(f"v_cvt_pk_bf16_f32 v{b}, v{b}, v{b+1}\nv_cvt_pk_bf16_f32 v{b+1}, v{b+2}, v{b+3}")
            for p in range(2):
                a(f"v_and_b32 v{b+4+p}, v{CM+12+p}, v{b+p}")
                a(f"v_bfi_b32 v{b+6+p}, v{CM+12+p}, 0, v{b+p}")
        OA = A0
        for u, (h, T) in enumerate(units):
            a(f"{MF} {vr(OA + u*8)}, {vr(VP + h*6 + T*2)}, {vr(SC + u*8 + 4)}, 0")
            a(f"{MF} {vr(OA + u*8 + 4)}, {vr(ONES)}, {vr(SC + u*8 + 4)}, 0")
        self.stamp("p1.pv")
        if ps == 0: self.census(); self.stamp("p1.census")
        OF = ACC
        for u in range(4): a(f"v_rcp_f32 v{OA+u*8+4}, v{OA+u*8+4}")
        for u, (h, T) in enumerate(units):
            b = OA + u*8
            for p in range(2):
                a(f"v_pk_mul_f32 {vr(b+2*p, 2)}, {vr(b+2*p, 2)}, {vr(b+4, 2)} op_sel_hi:[1,0]")
            for p in range(2):
                a(f"v_cvt_pk_bf16_f32 v{OF + T*4 + h*2 + p}, v{b+2*p}, v{b+2*p+1}")
        if ps == 0: self.next_arena()
        a(f"s_mul_i32 {sT[3]}, {sW}, {2*HT}\ns_lshl_b32 {sT[4]}, {sC}, 10\ns_add_u32 {sT[3]}, {sT[3]}, {sT[4]}")
        a(f"s_add_u32 {sT[3]}, {sT[3]}, {sWR}\ns_add_u32 {sT[3]}, {sT[3]}, {O_H}\ns_add_u32 {sT[4]}, {sT[3]}, {HT}")
        self.store2([f"buffer_store_dwordx4 {vr(OF + 4*T)}, {vL16}, {WS}, {sT[3+T]} offen" for T in range(2)])
        self.stamp("p1.stored")
        self.flag(sFLA, ps*4 + 1)
        self.stamp("p1.flag")

    def census(self):
        a = self.a
        lp, ld = a.label("L_cen"), a.label("L_cend")
        a(f"s_sub_u32 {sT[3]}, {sR}, {sHAS}\ns_lshl_b32 {sT[3]}, {sT[3]}, 4\ns_lshl_b32 {sT[4]}, {sR}, 4")
        a(f"v_mov_b32 v{vTMP}, 0\ns_mov_b32 {sSPIN}, 0")
        a(f"{lp}:")
        a(f"buffer_load_dwordx2 {vr(vTMP+2, 2)}, v{vTMP}, {DBG}, {sT[4]} offen sc1")
        a(f"buffer_load_dwordx2 {vr(vTMP+4, 2)}, v{vTMP}, {DBG}, {sT[3]} offen sc1")
        a("s_waitcnt vmcnt(0)")
        a(f"v_readfirstlane_b32 {sT[5]}, v{vTMP+2}\nv_readfirstlane_b32 {sT[6]}, v{vTMP+3}\nv_readfirstlane_b32 {sT[7]}, v{vTMP+5}")
        a(f"s_and_b32 {sT[6]}, {sT[6]}, {sT[7]}\ns_lshl_b32 {sT[6]}, {sT[6]}, 4\ns_and_b32 {sT[6]}, {sT[6]}, {sT[5]}")
        a(f"s_cbranch_scc1 {ld}")
        a(f"s_add_u32 {sSPIN}, {sSPIN}, 1\ns_cmp_lt_u32 {sSPIN}, {self.c.spin_max}\ns_cbranch_scc1 {lp}")
        a(f"{ld}:")
        a.vm = []
        a(f"s_lshl_b32 {sT[6]}, {sCEN}, 4\ns_cmp_lg_u32 {sT[5]}, {sT[6]}\ns_cselect_b32 {sSLOW}, 1, {1 if self.c.force_slow else 0}")
        a(f"s_lshl_b32 {sSTEP}, {sSLOW}, 23\ns_mov_b32 {sWR}, {sRB0}")

    def narrow(self, ps, which):
        a = self.a
        nks = 4 if which == 2 else 11
        wb = 0 if which == 2 else 64
        ph = ps*4 + which
        last = (ph == 8)
        RING = 16
        A0 = VB
        AC = A0 + 64
        OWN = AC + 32
        PS = OWN + 16
        for i in range(8):
            a(f"v_lshlrev_b32 v{OWN+2*i}, 16, v{XR+i}\nv_and_b32 v{OWN+2*i+1}, 0xffff0000, v{XR+i}")
        self.next_arena()
        for s in range(4):
            a(f"s_add_u32 {sT[s]}, {sW}, {s+1}\ns_and_b32 {sT[s]}, {sT[s]}, 3")
            if s < 3: a(f"s_mul_i32 {sT[8]}, {sT[s]}, {PAGE}\ns_add_u32 {sT[8]}, {sT[8]}, {L_Z + s*4*KB}\nv_add_u32 v{vTMP+3+s}, {sT[8]}, {vL16}")
            a(f"s_lshl_b32 {sT[8]}, {sMH}, 2\ns_add_u32 {sT[s]}, {sT[s]}, {sT[8]}\ns_mul_i32 {sT[s]}, {sT[s]}, {HT}")
            a(f"s_mul_i32 {sT[8]}, {sW}, {nks*KB}\ns_add_u32 {sT[s]}, {sT[s]}, {sT[8]}\ns_add_u32 {sT[s]}, {sT[s]}, {sRD}\ns_add_u32 {sT[s]}, {sT[s]}, {O_H}")
        a(f"s_cmp_eq_u32 {sW}, 3\ns_cselect_b32 {sT[9]}, {KB}, 0")
        self.poll(vPA, sPLA, ph - 1)
        self.stamp(f"p{which}.polled")
        N = 4 * nks
        def lda(f):
            if f >= N: return
            s, j = divmod(f, nks)
            if j and j % 4 == 0: a(f"s_add_u32 {sT[s]}, {sT[s]}, 4096")
            if j == 10: a(f"s_sub_u32 {sT[s]}, {sT[s]}, {sT[9]}")
            a.vmem(f"buffer_load_dwordx4 {vr(A0 + (f % RING)*4)}, {vL16}, {WS}, {sT[s]} offen offset:{(j%4)*KB} sc1", f"a{f}")
        PD = 10
        for f in range(PD): lda(f)
        todo = []
        for f in range(N):
            s, j = divmod(f, nks)
            lda(f + PD)
            a.wait(vm=f"a{f}")
            d0 = OWN if s == 3 else AC + (s % 2) * 16
            for t in range(4):
                d = d0 + t*4
                c = "0" if (j == 0 and s < 3) else vr(d)
                a(f"{MF} {vr(d)}, {ar(wb + j*16 + t*4)}, {vr(A0 + (f % RING)*4)}, {c}")
                if todo: todo.pop(0)()
            if j == 1 and s > 0:
                pd = AC + ((s-1) % 2) * 16
                for t in range(4):
                    todo.append(lambda t=t, pd=pd, s=s: a.lds(f"ds_write_b128 v{vTMP+3+s-1}, {vr(pd + t*4)} offset:{t*KB}", "pw"))
            if s == 3 and j == 2:
                while todo: todo.pop(0)()
                a.wait(lg="all")
                a("s_barrier")
                for i in range(12):
                    todo.append(lambda i=i: a.lds(f"ds_read_b128 {vr(PS + i*4)}, {vPGW} offset:{i*KB}", f"pr{i}"))
        while todo: todo.pop(0)()
        self.stamp(f"p{which}.main")
        a.wait(lg="pr7")
        for i in range(8): a(f"v_pk_add_f32 {vr(PS+2*i, 2)}, {vr(PS+2*i, 2)}, {vr(PS+16+2*i, 2)}")
        a.wait(lg="all")
        for i in range(8): a(f"v_pk_add_f32 {vr(OWN+2*i, 2)}, {vr(OWN+2*i, 2)}, {vr(PS+32+2*i, 2)}")
        for i in range(8): a(f"v_pk_add_f32 {vr(OWN+2*i, 2)}, {vr(OWN+2*i, 2)}, {vr(PS+2*i, 2)}")
        for i in range(8): a(f"v_cvt_pk_bf16_f32 v{XR+i}, v{OWN+2*i}, v{OWN+2*i+1}")
        F = AC
        for i in range(8): a(f"v_mov_b32 v{F+i}, v{XR+i}")
        for p in range(2):
            a(f"v_permlane16_swap_b32 v{F+4*p}, v{F+4*p+2}\nv_permlane16_swap_b32 v{F+4*p+1}, v{F+4*p+3}")
        a(f"s_lshl_b32 {sT[0]}, {sMH}, 2\ns_add_u32 {sT[0]}, {sT[0]}, {sW}")
        if last:
            a(f"v_and_b32 v{vTMP}, 15, {vL}\nv_lshlrev_b32 v{vTMP}, 11, v{vTMP}\nv_lshrrev_b32 v{vTMP+1}, 8, {vXst}\nv_lshl_or_b32 v{vTMP}, v{vTMP+1}, 4, v{vTMP}")
            a(f"s_lshl_b32 {sT[0]}, {sT[0]}, 15\ns_add_u32 {sT[0]}, {sT[0]}, {sROW}\ns_lshl_b32 {sT[1]}, {sNB}, 7\ns_add_u32 {sT[0]}, {sT[0]}, {sT[1]}")
            for p in range(2):
                a.vmem(f"buffer_store_dwordx4 {vr(F+4*p)}, v{vTMP}, {OUT}, {sT[0]} offen offset:{64*p}")
            return
        S = AC + 8
        a(f"v_mov_b32 v{S}, 0\nv_mov_b32 v{S+1}, 0")
        for i in range(8):
            a(f"v_dot2c_f32_bf16 v{S}, v{XR+i}, v{ONES}\nv_dot2c_f32_bf16 v{S+1}, v{XR+i}, v{XR+i}")
        a(f"s_lshl_b32 {sT[1]}, {sT[0]}, 14\ns_lshl_b32 {sT[2]}, {sNB}, 11\ns_add_u32 {sT[1]}, {sT[1]}, {sT[2]}\ns_add_u32 {sT[1]}, {sT[1]}, {sWR}")
        a(f"s_lshl_b32 {sT[3]}, {sT[0]}, 10\ns_lshl_b32 {sT[4]}, {sNB}, 7\ns_add_u32 {sT[3]}, {sT[3]}, {sT[4]}\ns_add_u32 {sT[3]}, {sT[3]}, {sWR}\ns_add_u32 {sT[3]}, {sT[3]}, {O_ST}")
        self.gsum2(S)
        self.store2([f"buffer_store_dwordx4 {vr(F+4*p)}, {vXst}, {WS}, {sT[1]} offen offset:{p*KB}" for p in range(2)]
                    + ["s_mov_b64 exec, 0xffff", f"buffer_store_dwordx2 {vr(S, 2)}, {vL8}, {WS}, {sT[3]} offen", "s_mov_b64 exec, -1"])
        self.stamp(f"p{which}.stored")
        self.flag(sFLB, ph)
        self.stamp(f"p{which}.flag")
        if ph == 4:
            l = a.label("L_nhp")
            a(f"s_cmp_lg_u32 {sT[0]}, 7\ns_cbranch_scc1 {l}")
            a(f"s_add_u32 {sT[1]}, {sT[2]}, {sRB0}\ns_add_u32 {sT[1]}, {sT[1]}, {O_HALO}")
            a(f"s_add_u32 {sT[3]}, {sT[4]}, {sRB0}\ns_add_u32 {sT[3]}, {sT[3]}, {O_HALO + 16*KB}")
            for p in range(2):
                a(f"buffer_store_dwordx4 {vr(F+4*p)}, {vXst}, {WS}, {sT[1]} offen offset:{p*KB} sc1")
            a(f"s_mov_b64 exec, 0xffff\nbuffer_store_dwordx2 {vr(S, 2)}, {vL8}, {WS}, {sT[3]} offen sc1\ns_mov_b64 exec, 1")
            a(f"s_lshl_b32 {sT[1]}, {sNB}, 2\ns_add_u32 {sT[1]}, {sT[1]}, {sRB0}\ns_add_u32 {sT[1]}, {sT[1]}, {O_FL + 256}")
            a(f"v_mov_b32 v{vTMP}, 1\nv_mov_b32 v{vTMP+1}, 0")
            a("s_waitcnt vmcnt(0)")
            a(f"buffer_store_dword v{vTMP}, v{vTMP+1}, {WS}, {sT[1]} offen sc1")
            a(f"s_mov_b64 exec, -1\n{l}:")

    def w1_colsum(self):
        a = self.a
        WF = VB; CA = VB + 96
        a(f"s_lshl_b32 {sT[0]}, {sP0}, 6\nv_lshlrev_b32 v{vTMP}, 1, {vL}")
        a.vmem(f"buffer_load_short_d16_hi v{CA+24}, v{vTMP}, {B1}, {sT[0]} offen", "bias")
        a.vmem(f"buffer_load_short_d16_hi v{CA+25}, v{vTMP}, {B1}, {sT[0]} offen offset:128", "bias")
        a.wait(vm="all")
        a(f"s_mul_i32 {sT[0]}, {sW}, {24*KB}\nv_add_u32 v{vTMP}, {sT[0]}, {vT0}\nv_add_u32 v{vTMP+1}, {sT[0]}, {vT1}")
        for k in range(4):
            for j in range(6):
                for h in range(2):
                    a.lds(f"ds_read_b64_tr_b16 {vr(WF + (k*6+j)*4 + 2*h, 2)}, v{vTMP + j % 2} offset:{self.xblk(k, j // 2, h)}", f"c{k*6+j}")
        for k in range(4):
            for j in range(6):
                a.wait(lg=f"c{k*6+j}")
                a(f"{MF} {vr(CA + j*4)}, {vr(ONES)}, {vr(WF + (k*6+j)*4)}, {'0' if k == 0 else vr(CA + j*4)}")
        a(f"v_and_b32 v{CA+24}, 0xffff0000, v{CA+24}\nv_and_b32 v{CA+25}, 0xffff0000, v{CA+25}")
        a(f"v_lshlrev_b32 v{vTMP+2}, 2, {vL}\nv_add_u32 v{vTMP+2}, {L_BI}, v{vTMP+2}")
        a(f"ds_write2_b32 v{vTMP+2}, v{CA+24}, v{CA+25} offset0:0 offset1:64")
        a(f"s_mul_i32 {sT[0]}, {sW}, 384\ns_add_u32 {sT[0]}, {sT[0]}, {L_CSP}\nv_add_u32 v{vTMP}, {sT[0]}, {vPB}")
        for j in range(0, 6, 2):
            a.lds(f"ds_write2_b32 v{vTMP}, v{CA+j*4}, v{CA+j*4+4} offset0:{j*16} offset1:{j*16+16}")
        a.wait(lg="all")

    def p3(self, ps):
        a = self.a
        ph = ps*4 + 3
        A0 = VB
        ACC = A0 + 64
        WF = ACC + 48
        TT = WF + 32
        ST = TT + 48
        STL = ST + 4
        RING = 8
        areg = lambda ks, T: A0 + ((ks % RING) * 2 + T) * 4
        sA0, sA1 = sT[0], sT[1]
        self.next_arena()
        self.poll(vPB, sPLB, ph - 1)
        self.stamp("p3.polled")
        a(f"s_lshl_b32 {sA0}, {sW}, 15\ns_add_u32 {sA0}, {sA0}, {sRD}\ns_add_u32 {sA1}, {sA0}, {16*KB}")
        a(f"s_lshl_b32 {sT[3]}, {sW}, 11\ns_add_u32 {sT[3]}, {sT[3]}, {sRD}\ns_add_u32 {sT[3]}, {sT[3]}, {O_ST}")
        def lda(ks):
            if ks >= 16: return
            if ks and ks % 4 == 0: a(f"s_add_u32 {sA0}, {sA0}, 4096\ns_add_u32 {sA1}, {sA1}, 4096")
            for T in range(2):
                a.vmem(f"buffer_load_dwordx4 {vr(areg(ks, T))}, {vL16}, {WS}, {(sA0, sA1)[T]} offen offset:{(ks%4)*KB} sc1", f"a{ks}")
        PD = 5
        for ks in range(PD): lda(ks)
        for T in range(2):
            for n in range(2):
                a.vmem(f"buffer_load_dwordx2 {vr(STL + T*4 + n*2, 2)}, {vSTL}, {WS}, {sT[3]} offen offset:{T*KB + n*128} sc1", "stl")
        a("s_barrier")
        if ps == 0:
            a(f"v_lshlrev_b32 v{vTMP+3}, 2, {vL}\nv_add_u32 v{vTMP+3}, {L_CSP}, v{vTMP+3}")
            for w in range(4):
                a.lds(f"ds_read2_b32 {vr(TT + 2*w, 2)}, v{vTMP+3} offset0:{w*96} offset1:{w*96+64}" if w*96+64 < 256 else
                      f"ds_read2_b32 {vr(TT + 2*w, 2)}, v{vTMP+4} offset0:{w*96-192} offset1:{w*96+64-192}", "cp")
                if w == 0: a(f"v_add_u32 v{vTMP+4}, 768, v{vTMP+3}")
            a.wait(lg="all")
            a(f"v_pk_add_f32 {vr(TT, 2)}, {vr(TT, 2)}, {vr(TT+2, 2)}\nv_pk_add_f32 {vr(TT+4, 2)}, {vr(TT+4, 2)}, {vr(TT+6, 2)}")
            a(f"v_pk_add_f32 {vr(TT, 2)}, {vr(TT, 2)}, {vr(TT+4, 2)}")
            a(f"v_add_u32 v{vTMP+3}, {L_CS - L_CSP}, v{vTMP+3}")
            a(f"ds_write_b32 v{vTMP+3}, v{TT}")
            a(f"ds_write_b32 v{vTMP+3}, v{TT+1} offset:256")
            a("s_waitcnt lgkmcnt(0)")
        self.sync_set = set()
        def pre_k(ks):
            lda(ks + PD)
            a.wait(vm=f"a{ks}")
            if ps == 0:
                if ks == 6: self.stage_consume(2); self.stage_issue(3)
                if ks == 15: self.stage_consume(3); self.stage_issue(4)
            return False
        self.wide_gemm(areg, ACC, WF, pre_k, False)
        self.stamp("p3.main")
        a("s_barrier")
        CB = A0
        a(f"v_add_u32 v{vTMP+3}, {L_CS}, {vG16}")
        for j in range(6):
            a.lds(f"ds_read_b128 {vr(CB + j*4)}, v{vTMP+3} offset:{j*64}", "cb")
            a.lds(f"ds_read_b128 {vr(CB + 24 + j*4)}, v{vTMP+3} offset:{512 + j*64}", "cb")
        a.wait(vm="stl")
        for T in range(2):
            a(f"v_pk_add_f32 {vr(ST+2*T, 2)}, {vr(STL+4*T, 2)}, {vr(STL+4*T+2, 2)}")
            self.gsum2(ST + 2*T); self.stats_finish(ST + 2*T)
        a.wait(lg="all")
        a(f"s_mul_i32 {sT[3]}, {sW}, {2*HT}\ns_lshl_b32 {sT[4]}, {sP0}, 10\ns_add_u32 {sT[3]}, {sT[3]}, {sT[4]}")
        a(f"s_add_u32 {sT[3]}, {sT[3]}, {sWR}\ns_add_u32 {sT[3]}, {sT[3]}, {O_H}\ns_add_u32 {sT[4]}, {sT[3]}, {HT}")
        a(f"s_mov_b32 {sT[6]}, {f32(1.4426950408889634)}\ns_mov_b32 {sT[7]}, {f32(1.4426950408889634)}")
        HF = WF
        for T in range(2):
            st = vr(ST + 2*T, 2)
            for p in range(3):
                regs = []
                for t in range(2):
                    j = p*2 + t
                    for q in range(2):
                        regs.append((ACC + (j*2 + T)*4 + 2*q, CB + j*4 + 2*q, CB + 24 + j*4 + 2*q, TT + (t*2 + q)*2 + (p % 2)*16, HF + (T*3 + p)*4 + t*2 + q))
                for (ac, cs, bi, e, o) in regs: a(f"v_pk_fma_f32 {vr(e, 2)}, {vr(cs, 2)}, {st}, {vr(bi, 2)} op_sel:[0,1,0] op_sel_hi:[1,1,1]")
                for (ac, cs, bi, e, o) in regs: a(f"v_pk_fma_f32 {vr(ac, 2)}, {vr(ac, 2)}, {st}, {vr(e, 2)} op_sel_hi:[1,0,1]")
                for (ac, cs, bi, e, o) in regs: a(f"v_pk_mul_f32 {vr(e, 2)}, {vr(ac, 2)}, s[70:71]")
                for (ac, cs, bi, e, o) in regs: a(f"v_exp_f32 v{e}, v{e}\nv_exp_f32 v{e+1}, v{e+1}")
                for (ac, cs, bi, e, o) in regs: a(f"v_pk_fma_f32 {vr(e+8, 2)}, {vr(e, 2)}, 0.5, 1.0 op_sel_hi:[1,0,0]")
                for (ac, cs, bi, e, o) in regs: a(f"v_pk_fma_f32 {vr(e, 2)}, {vr(e, 2)}, {vr(e+8, 2)}, 1.0 op_sel_hi:[1,1,0]")
                for (ac, cs, bi, e, o) in regs: a(f"v_rcp_f32 v{e}, v{e}\nv_rcp_f32 v{e+1}, v{e+1}")
                for (ac, cs, bi, e, o) in regs: a(f"v_pk_fma_f32 {vr(ac, 2)}, {vr(ac, 2)}, {vr(e, 2)}, {vr(ac, 2)} neg_lo:[1,0,0] neg_hi:[1,0,0]")
                for (ac, cs, bi, e, o) in regs: a(f"v_cvt_pk_bf16_f32 v{o}, v{ac}, v{ac+1}")
            self.store2([f"buffer_store_dwordx4 {vr(HF + (T*3 + p)*4)}, {vL16}, {WS}, {sT[3+T]} offen offset:{p*KB}" for p in range(3)])
        self.stamp("p3.stored")
        self.flag(sFLA, ph)
        self.stamp("p3.flag")

    def build(self):
        a = self.a
        self.prologue()
        for ps in range(2):
            self.p1(ps)
            if ps == 0:
                self.stage_consume(0); self.stage_issue(1)
            for j in range(4): self.x_dma_own("1", j, "w1")
            if ps == 0: self.stage_consume(1); a("s_barrier")
            self.narrow(ps, 2)
            if ps == 0:
                self.stage_issue(2)
                self.w1_colsum()
                a.vm = []
            self.p3(ps)
            if ps == 0:
                self.stage_consume(4); a("s_barrier")
                for j in range(4): self.x_dma_own("q", j, "wq")
            self.narrow(ps, 4)
        self.stamp("end")
        if self.c.stamps:
            a(f"s_memrealtime {sSTMP}\ns_waitcnt lgkmcnt(0)\nv_writelane_b32 {vSTAMP}, s90, 63")
            a(f"s_lshl_b32 {sT[0]}, s2, 2\ns_add_u32 {sT[0]}, {sT[0]}, {sW}\ns_lshl_b32 {sT[0]}, {sT[0]}, 8\ns_add_u32 {sT[0]}, {sT[0]}, {O_STAMP}")
            a(f"v_lshlrev_b32 v{vTMP}, 2, {vL}")
            a(f"buffer_store_dword {vSTAMP}, v{vTMP}, {WS}, {sT[0]} offen")
        if self.c.dbgstamps:
            a(f"s_or_b32 {sT[0]}, s2, {sW}\ns_cmp_lg_u32 {sT[0]}, 0\ns_cbranch_scc1 L_end")
            a(f"v_lshlrev_b32 v{vTMP}, 2, {vL}\ns_mov_b64 exec, 0xcccc")
            a(f"buffer_store_dword {vSTAMP}, v{vTMP}, {DBG}, 0 offen sc1")
        a("L_end:\ns_endpgm")
        head = open("cdna_kernels/" + NAME + ".s.ref").read().split("; Override launch")[0]
        head += f"; @launch grid=(256,1,1) block=(256,1,1) lds={LDS_BYTES}\n"
        head += f'.amdgcn_target "amdgcn-amd-amdhsa--gfx950"\n.text\n.globl {NAME}_kernel\n.p2align 8\n.type {NAME}_kernel,@function\n{NAME}_kernel:\n'
        tail = f'''.section .rodata,"a"
.p2align 6
.amdhsa_kernel {NAME}_kernel
  .amdhsa_next_free_vgpr 512
  .amdhsa_next_free_sgpr 96
  .amdhsa_accum_offset 256
  .amdhsa_group_segment_fixed_size 0
  .amdhsa_kernarg_size 80
  .amdhsa_user_sgpr_count 2
  .amdhsa_user_sgpr_kernarg_segment_ptr 1
  .amdhsa_system_sgpr_workgroup_id_x 1
  .amdhsa_float_denorm_mode_32 3
.end_amdhsa_kernel
'''
        return head + a.text() + tail

def make(**kw):
    c = Cfg()
    for k, v in kw.items(): setattr(c, k, v)
    g = Gen(c)
    return g.build(), g

if __name__ == "__main__":
    out = sys.argv[1] if len(sys.argv) > 1 else "cdna_kernels/" + NAME + ".s"
    kw = {k: True for k in sys.argv[2:]}
    txt, g = make(**kw)
    open(out, "w").write(txt)
    print("instructions:", len(g.a.ins), "padded wait states:", g.a.padded)
```

```python
import sys, struct
from asmlib import Asm

NAME = "interleave_layers__sliding_local_dilated__dense_activation_mish__prompt"
KB = 1024

def f32(x): return "0x%08x" % struct.unpack("<I", struct.pack("<f", x))[0]

class Cfg:
    stamps = False
    force_slow = False
    dbgstamps = False
    spin_max = 1 << 17
    touch = True
    touch2_ks = 5
    touch_ws = True
    hop2_chunks = 2
    p3_sync = (1, 5, 7, 9, 11, 13)
    hop1_units = 3
    w1_at_A = 6
    kstamps = ()
    LA = 6
    WE = 3
    PD0 = 2
    PD = 5
    NPD = 6
    ws_base = 0

X0, WQKV, WO, W1, B1, W2, OUT, DBG, WS = [f"s[{8+4*i}:{11+4*i}]" for i in range(9)]
sW, sR, sC, sMH, sNB = "s44", "s45", "s46", "s47", "s48"
sRB0   = "s49"
sRD, sWR, sSTEP = "s50", "s51", "s52"
sSLOW  = "s53"
sFLA, sFLB, sPLA, sPLB = "s54", "s55", "s56", "s57"
sROW, sP0, sCEN, sPAGE, sHAS, sW3K = "s58", "s59", "s60", "s61", "s62", "s63"
sT = [f"s{64+i}" for i in range(16)]
sD0, sD1 = "s80", "s81"
sQB, s1B = "s82", "s83"
sINV = "s84"; sSPIN = "s85"
sSTMP = "s[86:87]"
mL1, mL2, mL3, mDG = "s[88:89]", "s[90:91]", "s[92:93]", "s[94:95]"
sOB, s2B = "s96", "s97"
sLG = "s[98:99]"
sH1, sH2, sH3, sMT = "s3", "s4", "s5", "s6"

O_X, O_ST, O_FL, O_HALO, O_H = 0, 128*KB, 136*KB, 140*KB, 160*KB
HT = 44*KB
ARENA = 8 << 20
WS_SIZE = 256 << 20
O_STAMP = 72 << 20

L_X, L_Z, L_E, L_M = 0, 96*KB, 144*KB, 156*KB
PAGE = 12*KB
L_STT = L_E + 8*KB
L_CS1 = L_M
L_BI = L_M + 512
L_CSP = L_M + 1024
L_HST = L_M + 2560
LDS_BYTES = 160*KB
RSLOT = [L_E, L_Z, L_Z + PAGE, L_Z + 2*PAGE, L_Z + 3*PAGE, L_E, L_Z, L_Z + PAGE]

vL, vL16, vT0, vT1, vT0h, vT1h, vZ0, vZ1 = [f"v{i}" for i in range(8)]
vDU = ["v8", "v9", "v10", "v11"]
vD1 = ["v12", "v13", "v14"]
vPB = "v15"
ONES = 16
XR = 20
vCSV = 28
vSTL, vSTAMP, vG16, vTH, vR0, vR1 = "v30", "v31", "v32", "v33", "v34", "v35"
vTMP = 36
VB = 42
CM = 242
DUMMY = "a239"

def vr(b, n=4): return f"v[{b}:{b+n-1}]"
def ar(b, n=4): return f"a[{b}:{b+n-1}]"
MF = "v_mfma_f32_16x16x32_bf16"
MF16 = "v_mfma_f32_16x16x16_bf16"
LOG2E = 1.4426950408889634
assert all((l * 43691) >> 19 == l // 12 for l in range(192))

class Gen:
    def __init__(self, cfg):
        self.c = cfg
        self.a = Asm()
        self.nst = 0
        self.stn = []
        self.fq = []

    def stamp(self, name):
        if self.c.dbgstamps and name in ("start", "p1.main", "p1.flag", "p2.flag", "p3.flag", "p4.flag", "end"):
            slot = [2, 3, 6, 7, 10, 11, 14, 15, 18, 19, 22, 23][self.nst]
            if name == "end": slot = 15
            if self.nst < 6 or name == "end":
                self.a.wait(lg="all")
                self.a(f"s_memrealtime {sSTMP}\ns_waitcnt lgkmcnt(0)\nv_writelane_b32 {vSTAMP}, s86, {slot}")
            self.nst += 1
        if not self.c.stamps: return
        if self.c.stamps is not True and name not in self.c.stamps: return
        a = self.a
        a.wait(lg="all")
        a(f"s_memtime {sSTMP}\ns_waitcnt lgkmcnt(0)\nv_writelane_b32 {vSTAMP}, s86, {self.nst}")
        self.stn.append(name); self.nst += 1

    def F(self, x):
        if callable(x): self.fq.append(x)
        else:
            for line in x.split("\n"):
                if line.strip(): self.fq.append(lambda line=line: self.a(line))
    def fill(self, n=1):
        for _ in range(n):
            if self.fq: self.fq.pop(0)()
    def flush(self):
        while self.fq: self.fq.pop(0)()
    def run(self, items):
        for f in items: f()

    def m0(self, base, off):
        return lambda: self.a(f"s_add_u32 m0, {base}, {off}")
    def ld(self, voff, srd, soff, imm, tag, fl=""):
        return lambda: self.a.vmem(f"buffer_load_dwordx4 {voff}, {srd}, {soff} offen offset:{imm} {fl} lds", tag)

    def chunk_items(self, which, c, slot, vq=None):
        stride = 3072 if which == "q" else 2752
        srd, base = (WQKV, sQB) if which == "q" else (W1, s1B)
        it = [self.m0(sW3K, slot), lambda: self.a(f"s_add_u32 {sD0}, {base}, {c*64*stride}")]
        for p in range(3): it.append(self.ld(vq if which == "q" else vD1[p], srd, sD0, p*KB, f"c{c}"))
        return it

    def unit_items(self, u, slot):
        srd, base, j = (WO, sOB, u) if u < 4 else (W2, s2B, u - 4)
        it = [self.m0(sPAGE, slot*4*KB), lambda: self.a(f"s_add_u32 {sD1}, {base}, {j*32*KB}")]
        if u == 14: it.append(lambda: self.a(f"s_min_u32 {sD1}, {sD1}, {42*32*KB}"))
        for i in range(4): it.append(self.ld(vDU[i], srd, sD1, i*KB, f"u{u}"))
        return it

    def unit_reads(self, u, slot):
        a = self.a
        it = [lambda: a.wait(vm=f"u{u}")]
        for h in range(2):
            for p in range(2):
                for t in range(2):
                    base = u*16 + (p*2 + t)*4 + h*2
                    it.append(lambda base=base, t=t, h=h, p=p: a.lds(f"ds_read_b64_tr_b16 {ar(base, 2)}, {(vZ0, vZ1)[t]} offset:{slot*4*KB + (h*2 + p)*KB}", f"ur{u}"))
        return it

    def store2(self, items):
        a = self.a
        ls, le = a.label("L_slow"), a.label("L_st")
        a(f"s_cmp_lg_u32 {sSLOW}, 0\ns_cbranch_scc1 {ls}")
        for t in items: a(t)
        a(f"{le}:")
        self.cold.append((ls, le, items))
        for t in items:
            if t.startswith("buffer_"): a.vm.append("st")

    def flag(self, saddr, val):
        a = self.a
        a(f"v_mov_b32 v{vTMP}, {val}\nv_mov_b32 v{vTMP+1}, 0\ns_mov_b64 exec, 1")
        a.wait(vm="st")
        self.store2([f"buffer_store_dword v{vTMP}, v{vTMP+1}, {WS}, {saddr} offen"])
        a("s_mov_b64 exec, -1")

    def poll(self, voff, sline, val):
        a = self.a
        lp, ld = a.label("L_poll"), a.label("L_got")
        a(f"s_mov_b32 {sSPIN}, 0")
        a(f"{lp}:")
        a(f"buffer_load_dword v{vTMP+2}, {voff}, {WS}, {sline} offen sc1")
        a(f"s_add_u32 {sSPIN}, {sSPIN}, 1\ns_cmp_lt_u32 {sSPIN}, {self.c.spin_max}\ns_cbranch_scc0 {ld}")
        a("s_waitcnt vmcnt(0)")
        a(f"v_cmp_gt_u32 vcc, {val}, v{vTMP+2}")
        a(f"s_cbranch_vccnz {lp}")
        a(f"{ld}:")
        a.vm = []

    def next_arena(self):
        self.a(f"s_mov_b32 {sRD}, {sWR}\ns_add_u32 {sWR}, {sWR}, {sSTEP}")

    def stats_text(self, b, t):
        return (f"v_permlane16_swap_b32 v{b}, v{b+1}\n"
                f"v_add_f32 v{b}, v{b}, v{b+1}\n"
                f"v_mov_b32 v{t}, v{b}\n"
                f"v_permlane32_swap_b32 v{b}, v{t}\n"
                f"v_add_f32 v{b}, v{b}, v{t}\n"
                f"v_mul_f32 v{b}, {sINV}, v{b}\n"
                f"v_mov_b32 v{b+1}, v{b}\n"
                f"v_permlane16_swap_b32 v{b}, v{b+1}\n"
                f"v_fma_f32 v{t}, -v{b}, v{b}, v{b+1}\n"
                f"v_max_f32 v{t}, 0, v{t}\n"
                f"v_add_f32 v{t}, {f32(1e-5)}, v{t}\n"
                f"v_sub_f32 v{b+1}, 0, v{b}\n"
                f"v_rsq_f32 v{b}, v{t}")
    def F2(self, t0, t1):
        for x, y in zip(t0.split("\n"), t1.split("\n")): self.F(x); self.F(y)

    def diag_text(self, dst, ssum, gram):
        return (f"v_cndmask_b32 v{dst+1}, v{gram}, v{gram+1}, {mL1}\n"
                f"v_cndmask_b32 v{dst+1}, v{dst+1}, v{gram+2}, {mL2}\n"
                f"v_cndmask_b32 v{dst+1}, v{dst+1}, v{gram+3}, {mL3}\n"
                f"v_cndmask_b32 v{dst}, 0, v{ssum}, {mDG}\n"
                f"v_cndmask_b32 v{dst+1}, 0, v{dst+1}, {mDG}")

    def prologue2(self):
        a = self.a
        t0, t1, t2, t3, t4 = [f"v{vTMP+i}" for i in range(5)]
        a("s_sub_u32 s16, s16, 1024\ns_subb_u32 s17, s17, 0\ns_sub_u32 s28, s28, 1024\ns_subb_u32 s29, s29, 0")
        a(f"s_lshr_b32 {sMH}, {sC}, 3\ns_and_b32 {sNB}, {sC}, 7")
        a(f"s_lshr_b32 {sT[4]}, {sC}, 2\ns_and_b32 {sT[5]}, {sC}, 3\ns_mul_i32 {sT[5]}, {sT[5]}, 3")
        a(f"s_cmp_eq_u32 {sT[4]}, 3\ns_cselect_b32 {sT[6]}, 7, 8\ns_min_u32 {sT[5]}, {sT[5]}, {sT[6]}")
        a(f"s_mul_i32 {sP0}, {sT[4]}, 11\ns_add_u32 {sP0}, {sP0}, {sT[5]}")
        a(f"s_lshl_b32 {sT[4]}, {sP0}, 6\ns_add_u32 {s1B}, {s1B}, {sT[4]}")
        a(f"s_lshl_b32 {sT[4]}, {sNB}, 7\ns_lshl_b32 {sOB}, {sW}, 17\ns_add_u32 {sOB}, {sOB}, {sT[4]}")
        a(f"s_mul_i32 {s2B}, {sW}, {11*32*KB}\ns_add_u32 {s2B}, {s2B}, {sT[4]}")
        a(f"s_add_u32 {sH2}, {sT[4]}, {sRB0}\ns_add_u32 {sH2}, {sH2}, {O_HALO + 16*KB}")
        a(f"s_lshl_b32 {sH1}, {sNB}, 11\ns_add_u32 {sH1}, {sH1}, {sRB0}\ns_add_u32 {sH1}, {sH1}, {O_HALO}")
        a(f"s_lshl_b32 {sH3}, {sNB}, 2\ns_add_u32 {sH3}, {sH3}, {sRB0}\ns_add_u32 {sH3}, {sH3}, {O_FL + 256}")
        a(f"s_lshl_b32 {sMT}, {sMH}, 2\ns_add_u32 {sMT}, {sMT}, {sW}")
        a(f"s_add_u32 {sT[4]}, {sRB0}, {O_FL}")
        a(f"s_lshl_b32 {sT[5]}, {sW}, 6\ns_add_u32 {sPLB}, {sT[4]}, {sT[5]}")
        a(f"s_lshl_b32 {sT[5]}, {sC}, 2\ns_add_u32 {sFLA}, {sPLB}, {sT[5]}")
        a(f"s_lshl_b32 {sT[5]}, {sMH}, 7\ns_add_u32 {sT[4]}, {sT[4]}, {sT[5]}")
        a(f"s_lshl_b32 {sT[5]}, {sW}, 4\ns_add_u32 {sPLA}, {sT[4]}, {sT[5]}")
        a(f"s_lshl_b32 {sT[5]}, {sW}, 3\ns_add_u32 {sT[5]}, {sT[5]}, {sNB}\ns_lshl_b32 {sT[5]}, {sT[5]}, 2\ns_add_u32 {sFLB}, {sT[4]}, {sT[5]}")
        a(f"s_mov_b32 {sINV}, {f32(1/512)}")
        for m, v in ((88, 0x22222222), (90, 0x44444444), (92, 0x88888888)):
            a(f"s_mov_b32 s{m}, {v:#x}\ns_mov_b32 s{m+1}, {v:#x}")
        a("s_mov_b32 s94, 0x00f0000f\ns_mov_b32 s95, 0xf0000f00")
        a(f"s_mov_b32 s98, {f32(LOG2E)}\ns_mov_b32 s99, {f32(LOG2E)}")
        a(f"v_and_b32 {t0}, 15, {vL}\nv_lshrrev_b32 {t1}, 4, {vL}\nv_lshrrev_b32 {t2}, 2, {vL}\nv_and_b32 {t3}, 3, {vL}\nv_and_b32 {t4}, 1, {t1}")
        a(f"v_lshlrev_b32 {vL16}, 4, {vL}\nv_lshlrev_b32 {vG16}, 4, {t1}")
        a(f"v_lshlrev_b32 {vR0}, 3, {t3}\nv_lshl_or_b32 {vR0}, {t4}, 5, {vR0}")
        a(f"v_lshl_or_b32 {vT0}, {t2}, 6, {vR0}\nv_mul_u32_u24 {vR1}, 192, {t2}\nv_add_u32 {vR0}, {vR0}, {vR1}\nv_add_u32 {vR0}, {96*KB}, {vR0}\nv_xor_b32 {vR1}, 32, {vR0}")
        a(f"v_xor_b32 {vT1}, 32, {vT0}\nv_add_u32 {vT0h}, 0x10000, {vT0}\nv_add_u32 {vT1h}, 0x10000, {vT1}")
        a(f"v_add_u32 {vZ0}, {sPAGE}, {vT0}\nv_add_u32 {vZ1}, {sPAGE}, {vT1}")
        a(f"v_lshlrev_b32 {t4}, 1, {t4}\nv_xor_b32 {t3}, {t4}, {t3}\nv_lshlrev_b32 {t3}, 4, {t3}\nv_lshl_or_b32 {t3}, {t2}, 10, {t3}")
        for i in range(4): a(f"v_add_u32 {vDU[i]}, {(i >> 1)*16*KB + (i & 1)*64 - i*KB + KB}, {t3}")
        for i in range(3):
            a(f"v_add_u32 {t2}, {64*i}, {vL}\nv_mul_u32_u24 {t3}, 43691, {t2}\nv_lshrrev_b32 {t3}, 19, {t3}")
            a(f"v_mul_u32_u24 {t4}, 12, {t3}\nv_sub_u32 {t2}, {t2}, {t4}")
            a(f"v_bfe_u32 {t4}, {t3}, 2, 1\nv_lshlrev_b32 {t4}, 1, {t4}\nv_xor_b32 {t2}, {t2}, {t4}\nv_lshlrev_b32 {t2}, 4, {t2}")
            a(f"v_and_b32 {t4}, 12, {t3}\nv_add_u32 {t3}, {t3}, {t4}\nv_mul_u32_u24 {t3}, 2752, {t3}")
            a(f"v_add_u32 {vD1[i]}, {t2}, {t3}")
            if i: a(f"v_subrev_u32 {vD1[i]}, {i*KB}, {vD1[i]}")
        a(f"v_lshlrev_b32 {vPB}, 2, {t0}")
        a(f"v_lshlrev_b32 {vSTL}, 3, {t0}\nv_lshl_or_b32 {vSTL}, {t1}, 8, {vSTL}")
        for i in range(4): a(f"v_mov_b32 v{ONES+i}, 0x3f803f80")
        a(f"s_and_b32 {sT[4]}, {sW}, 1\ns_lshl_b32 {sT[4]}, {sT[4]}, 5\nv_xor_b32 {vTH}, {sT[4]}, {vT0}")
        a(f"s_lshr_b32 {sT[4]}, {sW}, 1\ns_add_u32 {sT[4]}, {sT[4]}, 1\ns_lshl_b32 {sT[4]}, {sT[4]}, 10\nv_add_u32 {vTH}, {sT[4]}, {vTH}")
        a(f"v_lshlrev_b32 {t1}, 2, {t1}\nv_sub_u32 {t1}, {t0}, {t1}\nv_mov_b32 {t2}, 0xff800000")
        a(f"s_or_b32 {sT[4]}, {sHAS}, {sW}\ns_cmp_lg_u32 {sT[4]}, 0\ns_cselect_b32 {sT[4]}, 0, 0xff800000")
        for r in range(4):
            a(f"v_subrev_u32 {t3}, {r}, {t1}")
            a(f"v_cmp_gt_u32 vcc, 8, {t3}\nv_cmp_gt_i32 s[70:71], -8, {t3}\nv_ashrrev_i32 {t3}, 31, {t3}\nv_cndmask_b32 v{CM+r}, {t2}, 0, vcc")
            a(f"v_cndmask_b32 v{CM+4+r}, {t2}, 0, s[70:71]")
            a(f"v_or_b32 v{CM+8+r}, {sT[4]}, v{CM+4+r}")
            if r % 2 == 0: a(f"v_and_b32 v{CM+12+r//2}, 0xffff, {t3}")
            else: a(f"v_and_b32 {t3}, 0xffff0000, {t3}\nv_or_b32 v{CM+12+r//2}, v{CM+12+r//2}, {t3}")

    def cs_addr(self, base, v0, pshift):
        a = self.a
        a(f"s_lshr_b32 {sT[4]}, {sW}, 1\ns_mul_i32 {sT[4]}, {sT[4]}, {6*KB}\ns_and_b32 {sT[5]}, {sW}, 1\ns_lshl_b32 {sT[6]}, {sT[5]}, 5\ns_lshl_b32 {sT[5]}, {sT[5]}, {pshift}")
        a(f"s_add_u32 {sT[4]}, {sT[4]}, {sT[5]}")
        a(f"v_xor_b32 v{base}, {sT[6]}, {v0}\nv_add_u32 v{base}, {sT[4]}, v{base}")
        a(f"v_xor_b32 v{base+1}, 32, v{base}\nv_add_u32 v{base+1}, {sT[5]}, v{base+1}\nv_add_u32 v{base+2}, {1 << pshift}, v{base}")

    def cs_publish_F(self, accs, t):
        a = self.a
        for i in range(3): self.F(f"v_accvgpr_read_b32 v{t+1+i}, a{accs + 4*i}")
        self.F(f"s_mul_i32 {sT[4]}, {sW}, 192\ns_add_u32 {sT[4]}, {sT[4]}, {L_CSP}\nv_add_u32 v{t}, {sT[4]}, {vPB}")
        self.F(lambda: a.lds(f"ds_write2_b32 v{t}, v{t+1}, v{t+2} offset0:0 offset1:16"))
        self.F(lambda: a.lds(f"ds_write_b32 v{t}, v{t+3} offset:128"))

    def wide(self, blk, areg, acc, wf, pre_k, swapV, post_frag=None, rate=lambda f: 2, a_lds=False, between=None):
        a = self.a
        LA = self.c.LA; WE = self.c.WE
        def rd(f, h):
            ks, j = divmod(f, 6)
            v, off = blk(ks, j // 2, h, j % 2)
            a.lds(f"ds_read_b64_tr_b16 {vr(wf + (f % 8)*4 + 2*h, 2)}, {v} offset:{off}", f"w{f}")
        for f in range(LA):
            for h in range(2): rd(f, h)
        if between: between()
        for ks in range(16):
            if self.c.kstamps and ks in self.c.kstamps: self.stamp(f"k{ks}")
            pre_k(ks)
            for j in range(6):
                f = ks*6 + j
                s = wf + (f % 8)*4
                if j == 0 and a_lds: a.wait(lg=f"x{ks}")
                if j % WE == 0: a.wait(vm=f"a{ks}" if j == 0 else None, lg=f"w{f+WE-1}")
                n = rate(f)
                for T in range(2):
                    d = acc + (j*2 + T)*4
                    c = "0" if ks == 0 else vr(d)
                    if swapV and j >= 4: a(f"{MF} {vr(d)}, {vr(areg(ks, T))}, {vr(s)}, {c}")
                    else: a(f"{MF} {vr(d)}, {vr(s)}, {vr(areg(ks, T))}, {c}")
                    if f + LA < 96: rd(f + LA, T)
                    else: self.fill(1)
                    self.fill((n + 1 - T) // 2)
                if post_frag: post_frag(ks, j)

    def a_loader(self, areg, sA0, sA1):
        a = self.a
        def items(ks):
            it = []
            if ks >= 16: return it
            if ks and ks % 4 == 0: it.append(lambda: a(f"s_add_u32 {sA0}, {sA0}, 4096")); it.append(lambda: a(f"s_add_u32 {sA1}, {sA1}, 4096"))
            for T in range(2):
                it.append(lambda T=T: a.vmem(f"buffer_load_dwordx4 {vr(areg(ks, T))}, {vL16}, {WS}, {(sA0, sA1)[T]} offen offset:{(ks%4)*KB} sc1", f"a{ks}"))
            return it
        stream = []
        for ks in range(16): stream.append(items(ks))
        return stream

    def a_sched(self, stream, ks):
        PD0, PD = self.c.PD0, self.c.PD
        upto = lambda k: min(16, PD0 + k + min(PD - PD0, (k + 1)//2) + 1) if k >= 0 else PD0
        out = []
        for k in range(upto(ks - 1), upto(ks)): out += stream[k]
        return out

    P1_A0 = VB; P1_X32 = VB + 64; P1_ACC = VB + 96; P1_WF = VB + 144; P1_ST = VB + 176; P1_HA = VB + 182; P1_RT = VB + 186

    def p1_prep(self):
        a = self.a
        CS = self.P1_X32 + 16
        sA0, sA1, sH = sT[0], sT[1], sT[2]
        self.next_arena()
        a(f"s_lshl_b32 {sA0}, {sW}, 15\ns_add_u32 {sA0}, {sA0}, {sRD}\ns_add_u32 {sA1}, {sA0}, {16*KB}")
        a(f"s_lshl_b32 {sT[3]}, {sW}, 11\ns_add_u32 {sT[3]}, {sT[3]}, {sRD}\ns_add_u32 {sT[3]}, {sT[3]}, {O_ST}")
        a(f"v_add_u32 v240, {60*KB}, {vTH}")
        for i in range(16): a(f"v_accvgpr_read_b32 v{CS+i}, a{240+i}")
        a(f"s_lshl_b32 {sT[4]}, {sW}, 9\ns_add_u32 {sT[4]}, {sT[4]}, {L_STT}\nv_add_u32 v{vTMP+4}, {sT[4]}, {vPB}\nv_add_u32 v{vTMP+5}, {sT[4]}, {vG16}")
        a(f"s_cmp_lg_u32 {sHAS}, 0\ns_cselect_b32 {sT[5]}, 0, 0x40000000\ns_cselect_b32 {sH}, {512*KB}, 0\ns_sub_u32 {sH}, {sRB0}, {sH}")
        a(f"s_add_u32 {sT[6]}, {sH}, {O_FL + 256}\ns_add_u32 {sT[7]}, {sH}, {O_HALO + 16*KB}")
        a(f"s_lshl_b32 {sT[4]}, {sW}, 12\ns_add_u32 {sH}, {sH}, {sT[4]}\ns_add_u32 {sH}, {sH}, {O_HALO}")
        a(f"v_subrev_u32 {vR0}, {96*KB}, {vR0}\nv_subrev_u32 {vR1}, {96*KB}, {vR1}\nv_add_u32 {vZ0}, {48*KB}, {vR0}\nv_add_u32 {vZ1}, {48*KB}, {vR1}")

    def p1(self, ps):
        a = self.a
        def xblk(ks, p, h, t):
            ad = ((ks*2 + h)*3 + p)*KB
            return ((vT0, vT1)[t], ad) if ad < 64*KB else ((vT0h, vT1h)[t], ad - 64*KB)
        A0, X32, ACC, WF, ST, HA, RT = self.P1_A0, self.P1_X32, self.P1_ACC, self.P1_WF, self.P1_ST, self.P1_HA, self.P1_RT
        acc = lambda j, T: ACC + (j*2 + T)*4
        hw = lambda k: (X32 + k*4) if k < 8 else (A0 + (k-8)*4)
        sA0, sA1, sH = sT[0], sT[1], sT[2]
        def hw_read(k, h):
            off = (k*2 + h)*3*KB
            if off < 60*KB: a.lds(f"ds_read_b64_tr_b16 {vr(hw(k) + 2*h, 2)}, {vTH} offset:{off}", "hw")
            else: a.lds(f"ds_read_b64_tr_b16 {vr(hw(k) + 2*h, 2)}, v240 offset:{off - 60*KB}", "hw")
        MT = A0 + 48
        if ps == 0:
            AF = A0 + 32; CW = A0 + 48; CA = A0 + 60
            vX = ["v224", "v225", "v226", "v227"]
            vDQ, vXA0, vXA1, vXRa, vHr, vHd = "v228", "v229", "v230", "v231", "v241", "v232"
            CEN = 234
            t0, t1, t2, t3 = [f"v{vTMP+i}" for i in range(4)]
            a("s_cmp_ge_u32 s2, 256\ns_cbranch_scc1 L_end")
            for srd, off in ((8, 0), (12, 8), (16, 16), (20, 32), (24, 40), (28, 48), (32, 56), (36, 64), (40, 72)):
                a(f"s_load_dwordx2 s[{srd}:{srd+1}], s[0:1], {off}")
            a(f"v_lshrrev_b32 v1, 6, v0\nv_and_b32 v0, 63, v0\ns_and_b32 {sR}, s2, 15\nv_readfirstlane_b32 {sW}, v1")
            sizes = {8: 2048*1024, 12: 512*3072, 16: 513*1024, 20: 512*2752, 24: 2752, 28: 1377*1024, 32: 2048*1024, 36: 256, 40: WS_SIZE}
            for srd, n in sizes.items(): a(f"s_mov_b32 s{srd+2}, {n}\ns_mov_b32 s{srd+3}, 0x20000")
            if self.c.stamps or self.c.dbgstamps: a(f"v_mov_b32 {vSTAMP}, 0")
            a(f"s_lshr_b32 {sC}, s2, 4\ns_lshl_b32 {sRB0}, {sR}, 19\ns_add_u32 {sRB0}, {sRB0}, {self.c.ws_base}")
            a(f"s_and_b32 {sT[0]}, {sR}, 7\ns_lshl_b32 {sROW}, {sT[0]}, 8\ns_lshr_b32 {sT[1]}, {sR}, 3\ns_add_u32 {sROW}, {sROW}, {sT[1]}\ns_lshl_b32 {sROW}, {sROW}, 10")
            a(f"s_cmp_lg_u32 {sT[0]}, 0\ns_cselect_b32 {sHAS}, 1, 0")
            a(f"s_mul_i32 {sW3K}, {sW}, {3*KB}\ns_lshl_b32 {sPAGE}, {sW3K}, 2\ns_add_u32 {sPAGE}, {sPAGE}, {L_Z}")
            a(f"s_lshr_b32 {sT[2]}, {sW}, 1\ns_lshl_b32 {sT[2]}, {sT[2]}, 5\ns_and_b32 {sT[3]}, {sW}, 1\ns_lshl_b32 {sT[3]}, {sT[3]}, 2\ns_add_u32 {sT[2]}, {sT[2]}, {sT[3]}")
            a(f"s_mul_i32 {sQB}, {sT[2]}, 3072\ns_lshl_b32 {sT[3]}, {sC}, 6\ns_add_u32 {sQB}, {sQB}, {sT[3]}\ns_mul_i32 {s1B}, {sT[2]}, 2752")
            a(f"s_lshl_b32 {sA0}, {sW}, 16\ns_add_u32 {sA0}, {sA0}, {sROW}")
            a(f"v_lshrrev_b32 {t1}, 4, {vL}\nv_bfe_u32 {t2}, {vL}, 2, 2\nv_lshl_or_b32 {t2}, {t1}, 3, {t2}\nv_mul_u32_u24 {vDQ}, 3072, {t2}")
            a(f"v_and_b32 {t2}, 1, {t1}\nv_lshlrev_b32 {t2}, 1, {t2}\nv_and_b32 {t3}, 3, {vL}\nv_xor_b32 {t3}, {t2}, {t3}\nv_lshl_add_u32 {vDQ}, {t3}, 4, {vDQ}")
            a(f"v_lshrrev_b32 {t0}, 3, {vL}\nv_lshlrev_b32 {t2}, 11, {t0}\nv_and_b32 {t0}, 7, {vL}\nv_lshl_or_b32 {t3}, {t0}, 7, {t2}\nv_xor_b32 {t0}, {t0}, {t1}")
            a(f"v_lshl_or_b32 {vX[0]}, {t0}, 4, {t2}\nv_xor_b32 {vX[1]}, 64, {vX[0]}\nv_add_u32 {vX[1]}, {15*KB}, {vX[1]}")
            a(f"v_add_u32 {vX[2]}, {30*KB}, {vX[0]}\nv_add_u32 {vX[3]}, {30*KB}, {vX[1]}\nv_lshlrev_b32 v{vTMP+5}, 7, {vL}")
            a("s_waitcnt lgkmcnt(0)")
            if self.c.stamps: a(f"s_memrealtime {sSTMP}\ns_waitcnt lgkmcnt(0)\nv_writelane_b32 {vSTAMP}, s86, 62")
            self.stamp("start")
            def x_items(g):
                it = [self.m0(sPAGE, (g % 3)*4*KB), lambda: a(f"s_add_u32 {sA1}, {sA0}, {g*128}")]
                for i in range(4): it.append(self.ld(vX[i], X0, sA1, i*KB, f"c{g}"))
                return it
            grp = lambda g: x_items(g) + self.chunk_items("q", g, g*PAGE, vDQ)
            l1, l2, l3, l4 = [a.label("L_t") for _ in range(4)]
            if self.c.touch:
                a(f"s_cmp_lg_u32 {sW}, 0\ns_cbranch_scc1 {l1}")
                a(f"s_mul_i32 {sT[3]}, s2, {48*128}")
                a(f"buffer_load_dword {DUMMY}, v{vTMP+5}, {WQKV}, {sT[3]} offen")
                a(f"{l1}:\ns_cmp_lg_u32 {sW}, 1\ns_cbranch_scc1 {l2}")
                a(f"s_lshl_b32 {sT[3]}, {sC}, 14\ns_add_u32 {sT[3]}, {sT[3]}, {sROW}")
                a(f"buffer_load_dword {DUMMY}, {t3}, {X0}, {sT[3]} offen")
                a(f"{l2}:")
            a(f"s_cmp_lg_u32 {sW}, 2\ns_cbranch_scc1 {l3}")
            a(f"s_getpc_b64 s[70:71]\nL_pc:\ns_lshr_b32 {sT[3]}, s2, 3\ns_mul_i32 {sT[3]}, {sT[3]}, {13*128}\nv_add_u32 {t3}, {sT[3]}, v{vTMP+5}")
            a(f"v_min_u32 {t3}, L_code_end-L_pc-4, {t3}\ns_mov_b64 exec, 0x1fff")
            a(f"global_load_dword {DUMMY}, {t3}, s[70:71]")
            a(f"s_mov_b64 exec, -1\ns_cmp_lg_u32 {sC}, 0\ns_cbranch_scc1 {l3}")
            a(f"v_mov_b32 {t0}, 0\nv_mov_b32 {t1}, 0\nv_lshlrev_b32 {t2}, 3, {vL}\ns_add_u32 {sT[3]}, {sRB0}, {O_FL}")
            a(f"buffer_store_dwordx2 {vr(vTMP, 2)}, {t2}, {WS}, {sT[3]} offen sc1")
            a(f"{l3}:")
            self.run(grp(0))
            self.stamp("i.g0")
            self.run(grp(1))
            self.stamp("i.g1")
            self.prologue2()
            a(f"s_getreg_b32 {sT[4]}, hwreg(HW_REG_XCC_ID)\ns_and_b32 {sT[4]}, {sT[4]}, 15")
            a(f"s_mul_i32 {sT[5]}, {sT[4]}, {sT[4]}\ns_lshl_b32 {sT[5]}, {sT[5]}, 16\ns_lshl_b32 {sT[4]}, {sT[4]}, 8")
            a(f"s_add_u32 {sCEN}, {sT[4]}, {sT[5]}\ns_add_u32 {sCEN}, {sCEN}, 1")
            a(f"s_cmp_lg_u32 {sW}, 3\ns_cbranch_scc1 {l4}")
            a(f"v_mov_b32 {t2}, {sCEN}\nv_mov_b32 {t3}, 0\ns_lshl_b32 {sT[3]}, {sR}, 4\ns_mov_b64 exec, 1")
            a(f"buffer_atomic_add {t2}, {t3}, {DBG}, {sT[3]} offen sc1")
            a(f"s_mov_b64 exec, -1\n{l4}:")
            a(f"v_and_b32 {t0}, 15, {vL}\nv_lshrrev_b32 {t1}, 1, {t0}\nv_lshlrev_b32 {t1}, 4, {t1}\nv_xor_b32 {t1}, {t1}, {vG16}")
            a(f"v_lshl_or_b32 {vXA0}, {t0}, 7, {t1}\nv_xor_b32 {vXA1}, 64, {vXA0}")
            a(f"v_lshrrev_b32 {t2}, 5, {vL}\nv_lshrrev_b32 {t3}, 1, {t0}\nv_xor_b32 {t2}, {t2}, {t3}\nv_lshlrev_b32 {t2}, 4, {t2}")
            a(f"v_lshl_or_b32 {vXRa}, {t0}, 7, {t2}\nv_bfe_u32 {t2}, {vL}, 4, 1\nv_lshl_or_b32 {vXRa}, {t2}, 3, {vXRa}")
            a(f"s_lshr_b32 {sT[4]}, {sMT}, 1\ns_mul_i32 {sT[4]}, {sT[4]}, {PAGE}")
            a(f"s_and_b32 {sT[5]}, {sW}, 1\ns_lshl_b32 {sT[5]}, {sT[5]}, 11\ns_add_u32 {sT[4]}, {sT[4]}, {sT[5]}\ns_add_u32 {sT[4]}, {sT[4]}, {L_Z}")
            a(f"v_add_u32 {vXRa}, {sT[4]}, {vXRa}")
            a(f"v_or_b32 {t0}, 8, {t0}\nv_lshrrev_b32 {t1}, 1, {t0}\nv_lshlrev_b32 {t1}, 4, {t1}\nv_xor_b32 {t1}, {t1}, {vG16}\nv_and_b32 {t0}, 7, {t0}")
            a(f"v_lshl_or_b32 {vHr}, {t0}, 7, {t1}\nv_add_u32 {vHr}, {L_E}, {vHr}")
            a(f"v_add_u32 {vXA0}, {sPAGE}, {vXA0}\nv_add_u32 {vXA1}, {sPAGE}, {vXA1}\nv_add_u32 v240, {60*KB}, {vTH}")
            self.cs_addr(CA, vT0, 10)
            a(f"s_cmp_lg_u32 {sHAS}, 0\ns_cselect_b32 {sT[3]}, 0, 0x40000000\ns_cselect_b32 {sH}, {32*KB}, 0\ns_sub_u32 {sH}, {sROW}, {sH}")
            a(f"v_add_u32 {vHd}, {sT[3]}, {vX[1]}\ns_lshl_b32 {sT[3]}, {sW}, 8\ns_add_u32 {sH}, {sH}, {sT[3]}\ns_lshl_b32 {sT[3]}, {sW}, 11")
            self.stamp("i.pro")
            self.run(grp(2))
            self.stamp("p1.issued")
            SA = 208
            areg = lambda ks, T: AF + ((ks % 2)*2 + T)*4
            def a_items(ks):
                return [lambda T=T: a.lds(f"ds_read_b128 {vr(areg(ks, T))}, {(vXA0, vXA1)[ks % 2]} offset:{((ks // 2) % 3)*4*KB + T*2*KB}", f"x{ks}") for T in range(2)]
            def cw_F(c):
                if c == 4: self.F("\n".join(f"v_add_u32 v{CA+i}, {48*KB}, v{CA+i}" for i in range(3)))
                for i in range(3):
                    for h in range(2):
                        self.F(lambda i=i, h=h: a.lds(f"ds_read_b64_tr_b16 {vr(CW + i*4 + 2*h, 2)}, v{CA+i} offset:{(c*PAGE) % (48*KB) + h*3*KB}", "cw"))
            def xr(c):
                l = a.label("L_xr")
                a(f"s_cmp_lg_u32 {sNB}, {c}\ns_cbranch_scc1 {l}")
                for t in range(4): a(f"v_xor_b32 v{vTMP+4}, {t*32}, {vXRa}\nds_read_b64 {vr(XR + 2*t, 2)}, v{vTMP+4} offset:{(c % 3)*4*KB}")
                a(f"s_waitcnt lgkmcnt(0)\n{l}:")
            def st_mfma(ks, T):
                A_ = vr(areg(ks, T))
                a(f"{MF} {ar(SA + T*4)}, {vr(ONES)}, {A_}, {'0' if ks == 0 else ar(SA + T*4)}")
                self.fill(2)
                a(f"{MF} {ar(SA + 8 + T*4)}, {A_}, {A_}, {'0' if ks == 0 else ar(SA + 8 + T*4)}")
                self.fill(2)
            a.wait(vm="c0")
            a("s_barrier")
            self.stamp("p1.g0")
            self.run(a_items(0))
            xr(0)
            l = a.label("L_nl")
            a(f"s_lshl_b32 {sT[4]}, {sC}, 2\ns_add_u32 {sT[4]}, {sT[4]}, {sW}\ns_cmp_lg_u32 {sT[4]}, 2\ns_cbranch_scc1 {l}")
            a(f"v_mov_b32 {t2}, 1\nv_mov_b32 {t3}, 4\ns_lshl_b32 {sT[4]}, {sR}, 4\ns_mov_b64 exec, 1")
            a(f"buffer_atomic_add {t2}, {t3}, {DBG}, {sT[4]} offen sc1")
            a(f"s_mov_b64 exec, -1\n{l}:")
            HS = A0
            def pre_k(ks):
                if ks % 2 == 1 and ks < 15:
                    c = (ks + 1)//2
                    self.flush()
                    a.wait(vm=f"c{c}")
                    a("s_barrier")
                    if ks == 7: self.stamp("p1.g4")
                    xr(c)
                if ks + 1 < 16: self.fq[0:0] = a_items(ks + 1)
                for h in range(2): self.F(lambda h=h: hw_read(ks, h))
                if ks == 0:
                    cw_F(0)
                    for i in range(2): self.fq += [self.m0(sT[3], L_E + i*KB - KB - i*128), self.ld(vHd, X0, sH, KB + i*128, "halo")]
                if ks % 2 == 1 and ks < 15:
                    if c + 2 < 8: self.fq += grp(c + 2)
                    cw_F(c)
                if ks == self.c.touch2_ks:
                    def t2f():
                        m1, m2 = a.label("L_t"), a.label("L_t")
                        a(f"s_mul_i32 {sT[4]}, s2, {43*128}\ns_cmp_lg_u32 {sW}, 0\ns_cbranch_scc1 {m1}")
                        a(f"buffer_load_dword {DUMMY}, v{vTMP+5}, {W1}, {sT[4]} offen")
                        a(f"{m1}:\ns_cmp_lg_u32 {sW}, 1\ns_cbranch_scc1 {m2}")
                        a(f"buffer_load_dword {DUMMY}, v{vTMP+5}, {W2}, {sT[4]} offen offset:1024")
                        a(f"s_lshl_b32 {sT[4]}, s2, 11\ns_mov_b64 exec, 0xffff")
                        a(f"buffer_load_dword {DUMMY}, v{vTMP+5}, {WO}, {sT[4]} offen offset:1024")
                        a(f"s_mov_b64 exec, -1\n{m2}:")
                    self.F(t2f)
                if ks == 4:
                    self.F(lambda: a.wait(vm="halo"))
                    self.F(f"v_add_u32 v{vTMP}, {sT[3]}, {vHr}\nv_xor_b32 v{vTMP+1}, 64, v{vTMP}")
                    for k in range(4): self.F(lambda k=k: a.lds(f"ds_read_b128 {vr(HS + k*4)}, v{vTMP + k % 2} offset:{(k // 2)*KB}", "hx"))
                if ks == 6:
                    self.F(self.diag_text(ST + 4, HS + 16, HS + 20))
                    self.F(f"s_lshl_b32 {sT[4]}, {sW}, 7\ns_add_u32 {sT[4]}, {sT[4]}, {L_HST}\nv_lshlrev_b32 v{vTMP}, 1, {vPB}\nv_add_u32 v{vTMP}, {sT[4]}, v{vTMP}")
                    def hw_():
                        a(f"s_mov_b64 exec, {mDG}"); a.lds(f"ds_write_b64 v{vTMP}, {vr(ST + 4, 2)}"); a("s_mov_b64 exec, -1")
                    self.F(hw_)
                if ks == 10:
                    self.F(f"v_lshrrev_b32 v{vTMP}, 1, {vSTL}\nv_lshlrev_b32 v{vTMP+1}, 1, {vPB}\nv_and_b32 v{vTMP}, 0x180, v{vTMP}\nv_add_u32 v{vTMP}, v{vTMP}, v{vTMP+1}\nv_add_u32 v{vTMP}, {L_HST}, v{vTMP}")
                    self.F(lambda: a.lds(f"ds_read_b64 {vr(ST + 4, 2)}, v{vTMP}", "hs"))
                if ks == 12:
                    self.F(lambda: a.wait(lg="hs"))
                    self.F(self.stats_text(ST + 4, vTMP))
                if ks == 11: self.fq += self.unit_items(0, 2)
                if ks == 13:
                    self.F(f"s_sub_u32 {sT[8]}, {sR}, {sHAS}\ns_lshl_b32 {sT[8]}, {sT[8]}, 4\ns_lshl_b32 {sT[9]}, {sR}, 4\nv_mov_b32 v{vTMP+4}, 0")
                    self.F(lambda: a.vmem(f"buffer_load_dwordx2 {vr(CEN, 2)}, v{vTMP+4}, {DBG}, {sT[9]} offen sc1", "cen"))
                    self.F(lambda: a.vmem(f"buffer_load_dwordx2 {vr(CEN+2, 2)}, v{vTMP+4}, {DBG}, {sT[8]} offen sc1", "cen"))
                    self.fq += self.unit_items(1, 0)
                    if self.c.touch_ws:
                        self.F(f"s_lshl_b32 {sT[4]}, {sC}, 2\ns_add_u32 {sT[4]}, {sT[4]}, {sW}\ns_lshl_b32 {sT[4]}, {sT[4]}, 13\ns_add_u32 {sT[4]}, {sT[4]}, {sRB0}")
                        self.F(lambda: a.vmem(f"buffer_load_dword {DUMMY}, v{vTMP+5}, {WS}, {sT[4]} offen sc1", "tw"))
                if ks == 15:
                    self.flush()
                    self.cs_publish_F(SA + 16, vTMP)
                    G = CW
                    for T in range(2):
                        self.F(f"v_accvgpr_read_b32 v{G + T*5}, a{SA + T*4}")
                        for i in range(4): self.F(f"v_accvgpr_read_b32 v{G + T*5 + 1 + i}, a{SA + 8 + T*4 + i}")
                    self.F2(self.diag_text(ST, G, G + 1), self.diag_text(ST + 2, G + 5, G + 6))
                    self.F2(self.stats_text(ST, G), self.stats_text(ST + 2, G + 1))
            def post_frag(ks, j):
                if ks == 0 and j in (0, 1): st_mfma(0, j)
                if j in (3, 4) and ks + 1 < 16:
                    if j == 3: a.wait(lg=f"x{ks+1}")
                    st_mfma(ks + 1, j - 3)
                if ks % 2 == 0 and j == (5 if ks == 0 else 2):
                    if ks == 0: self.flush()
                    assert not any(False for _ in self.fq)
                    a.wait(lg="cw")
                    for i in range(3):
                        a(f"{MF} {ar(SA + 16 + i*4)}, {vr(ONES)}, {vr(CW + i*4)}, {'0' if ks == 0 else ar(SA + 16 + i*4)}")
                        self.fill(2)
                if ks % 2 == 1 and j == 5: self.flush()
                if ks == 5 and j in (0, 1):
                    a.wait(lg="hx")
                    for k in (2*j, 2*j + 1):
                        a(f"{MF} {vr(HS+16)}, {vr(ONES)}, {vr(HS + k*4)}, {'0' if k == 0 else vr(HS+16)}"); self.fill(2)
                        a(f"{MF} {vr(HS+20)}, {vr(HS + k*4)}, {vr(HS + k*4)}, {'0' if k == 0 else vr(HS+20)}"); self.fill(2)
            self.wide(xblk, areg, ACC, WF, pre_k, True, post_frag, rate=lambda f: 2 if f >= 90 else 1, a_lds=True)
            self.flush()
            self.stamp("p1.main")
            self.census(CEN); self.next_arena()
            a(f"s_lshl_b32 {sT[4]}, {sW}, 9\ns_add_u32 {sT[4]}, {sT[4]}, {L_STT}\nv_add_u32 v{vTMP+4}, {sT[4]}, {vPB}\nv_add_u32 v{vTMP+5}, {sT[4]}, {vG16}")
            for T in range(3): a.lds(f"ds_write2_b32 v{vTMP+4}, v{ST+2*T}, v{ST+2*T+1} offset0:{T*32} offset1:{T*32+16}")
            a(f"v_add_u32 v{vTMP}, {L_CSP}, {vG16}\nv_add_u32 v{vTMP+1}, {L_CSP}, {vPB}\nv_xor_b32 v240, 64, {vHr}")
            a.wait(lg="all")
            a("s_barrier")
            CS = AF; CS2 = WF + 16
            for j in range(4):
                a.lds(f"ds_read_b128 {vr(CS + j*4)}, v{vTMP} offset:{j*64}", "cs")
                a.lds(f"ds_read_b128 {vr(CS2 + j*4)}, v{vTMP} offset:{384 + j*64}", "cs")
            a.lds(f"ds_read2_b32 {vr(vCSV, 2)}, v{vTMP+1} offset0:64 offset1:80", "cs")
            a.lds(f"ds_read2_b32 {vr(vTMP+2, 2)}, v{vTMP+1} offset0:160 offset1:176", "cs")
            for T in range(3):
                a.lds(f"ds_read_b128 {vr(RT + 4*T)}, v{vTMP+5} offset:{T*128}", "tsr")
                a.lds(f"ds_read_b128 {vr(MT + 4*T)}, v{vTMP+5} offset:{T*128+64}", "tsr")
            hxa = lambda k: ("v241" if k % 2 == 0 else "v240", (k // 2)*KB)
            self.F(lambda: a.wait(lg="tsr"))
            for i in range(16): self.F(f"v_add_f32 v{CS+i}, v{CS+i}, v{CS2+i}")
            for i in range(2): self.F(f"v_add_f32 v{vCSV+i}, v{vCSV+i}, v{vTMP+2+i}")
            for j in (2, 3, 4, 5, 0, 1):
                for T in (1, 0):
                    for r in range(4):
                        if j < 4: self.F(f"v_fmac_f32 v{acc(j, T) + r}, v{CS + j*4 + r}, v{ST + 2*T + 1}")
                        else: self.F(f"v_fmac_f32 v{acc(j, T) + r}, v{MT + 4*T + r}, v{vCSV + j - 4}")
            for i in range(16): self.F(f"v_accvgpr_write_b32 a{240+i}, v{CS+i}")
        else:
            STL = X32; CS = X32 + 16
            areg = lambda ks, T: A0 + ((ks % 8)*2 + T)*4
            lda = self.a_loader(areg, sA0, sA1)
            def between():
                self.poll(vPB, sPLB, 4)
                self.stamp("p1.polled")
                for ks in range(self.c.PD0): self.run(lda[ks])
                l = a.label("L_nhf")
                a(f"s_cmp_lg_u32 {sMT}, 7\ns_cbranch_scc1 {l}")
                a(f"v_mov_b32 v{vTMP}, 1\nv_mov_b32 v{vTMP+1}, 0\ns_mov_b64 exec, 1")
                a(f"buffer_store_dword v{vTMP}, v{vTMP+1}, {WS}, {sH3} offen sc1")
                a(f"s_mov_b64 exec, -1\n{l}:")
            M2 = STL + 8
            def pre_k(ks):
                if ks == 6: self.flush()
                self.fq[0:0] = self.a_sched(lda, ks)
                if ks == 0:
                    for T in range(2):
                        for n in range(2):
                            self.F(lambda T=T, n=n: a.vmem(f"buffer_load_dwordx2 {vr(STL + T*4 + n*2, 2)}, {vSTL}, {WS}, {sT[3]} offen offset:{T*KB + n*128} sc1", "stl"))
                if ks == 2:
                    self.F(lambda: a.wait(vm="stl"))
                    for T in range(2):
                        self.F(f"v_add_f32 v{ST+2*T}, v{STL+4*T}, v{STL+4*T+2}\nv_add_f32 v{ST+2*T+1}, v{STL+4*T+1}, v{STL+4*T+3}")
                    self.F2(self.stats_text(ST, vTMP), self.stats_text(ST + 2, vTMP + 1))
                    for T in range(2):
                        self.F(lambda T=T: a.lds(f"ds_write2_b32 v{vTMP+4}, v{ST+2*T}, v{ST+2*T+1} offset0:{T*32} offset1:{T*32+16}"))
                    for T in range(2):
                        self.F(lambda T=T: a.lds(f"ds_read_b128 {vr(RT + 4*T)}, v{vTMP+5} offset:{T*128}", "tsr"))
                        self.F(lambda T=T: a.lds(f"ds_read_b128 {vr(M2 + 4*T)}, v{vTMP+5} offset:{T*128+64}", "tsr"))
                if ks == 9:
                    self.F(f"v_and_b32 v{vTMP+3}, 28, {vPB}")
                    self.F(lambda: a.vmem(f"buffer_load_dword v{vTMP+2}, v{vTMP+3}, {WS}, {sT[6]} offen sc1", "hf"))
                if ks == 10:
                    for k in range(8):
                        for h in range(2): self.F(lambda k=k, h=h: hw_read(k, h))
                if ks == 12:
                    self.flush()
                    l = a.label("L_nh")
                    a.wait(vm="hf")
                    a(f"v_cmp_gt_u32 vcc, {sHAS}, v{vTMP+2}")
                    a(f"s_cbranch_vccz {l}")
                    keep = list(a.vm)
                    self.poll(f"v{vTMP+3}", sT[6], 1)
                    a.vm = keep
                    a(f"{l}:")
                    self.F(f"v_add_u32 v241, {sT[5]}, {vL16}\nv_add_u32 v{vTMP+3}, {sT[5]}, {vSTL}\ns_mov_b32 m0, {sPAGE}")
                    for n in range(2):
                        self.F(lambda n=n: a.vmem(f"buffer_load_dwordx2 {vr(HA + n*2, 2)}, v{vTMP+3}, {WS}, {sT[7]} offen offset:{n*128} sc1", "hst"))
                    for i in range(4): self.F(self.ld("v241", WS, sH, i*KB, "halo", "sc1"))
                    for k in range(8, 16):
                        for h in range(2): self.F(lambda k=k, h=h: hw_read(k, h))
            def post_frag(ks, j):
                if ks in (6, 7, 8, 9):
                    jj = (j + 3) % 6
                    r = ks - 6
                    if ks == 6 and j == 0: a.wait(lg="tsr")
                    for T in range(2):
                        if jj < 4: a(f"v_fmac_f32 v{acc(jj, T) + r}, v{CS + jj*4 + r}, v{ST + 2*T + 1}")
                        else: a(f"v_fmac_f32 v{acc(jj, T) + r}, v{M2 + 4*T + r}, v{vCSV + jj - 4}")
            self.wide(xblk, areg, ACC, WF, pre_k, True, post_frag, rate=lambda f: 1 if 36 <= f < 60 else 2, between=between)
            self.flush()
            self.stamp("p1.main")
            a.wait(vm="halo", lg="all")
            a(f"v_add_f32 v{ST+4}, v{HA}, v{HA+2}\nv_add_f32 v{ST+5}, v{HA+1}, v{HA+3}")
            a(f"v_add_u32 v240, {L_Z}, {vL16}")
            a("s_barrier")
            hxa = lambda k: ("v240", (k // 4)*PAGE + (k % 4)*KB)
        self.stamp("p1.A")
        HX = WF
        def hx_read(k):
            v, off = hxa(k)
            a.lds(f"ds_read_b128 {vr(HX + (k % 4)*4)}, {v} offset:{off}", f"hx{k}")
        for k in range(3): hx_read(k)
        KP = WF + 16
        def scale_pack(j, T, dst):
            b = acc(j, T)
            for r in range(4): self.F(f"v_mul_f32 v{b+r}, v{b+r}, v{(ST + 2*T) if j < 4 else (RT + 4*T + r)}")
            self.F(f"v_cvt_pk_bf16_f32 v{dst}, v{b}, v{b+1}\nv_cvt_pk_bf16_f32 v{dst+1}, v{b+2}, v{b+3}")
        VPb = [acc(0, 0) + 2, acc(1, 0) + 2]
        QPb = lambda h, T: (WF + 28 + T*2) if h == 0 else (A0 + 60 + T*2)
        if ps == 1:
            st = self.stats_text(ST + 4, vTMP).split("\n")
            w1 = []
            for c in range(self.c.w1_at_A): w1 += self.chunk_items("1", c, c*PAGE)
            for x in st:
                self.F(x)
                for _ in range(2):
                    if w1: self.F(w1.pop(0))
            self.F(lambda: a.lds(f"ds_write2_b32 v{vTMP+4}, v{ST+4}, v{ST+5} offset0:64 offset1:80"))
            self.F(lambda: a.lds(f"ds_read_b128 {vr(RT + 8)}, v{vTMP+5} offset:256", "tsr"))
            self.F(lambda: a.lds(f"ds_read_b128 {vr(MT + 8)}, v{vTMP+5} offset:320", "tsr"))
            self.fq += w1
        for h in range(2):
            for T in range(2):
                b = acc(h, T)
                self.F(f"v_cvt_pk_bf16_f32 v{QPb(h, T)}, v{b}, v{b+1}\nv_cvt_pk_bf16_f32 v{QPb(h, T)+1}, v{b+2}, v{b+3}")
        for T in (1, 0):
            for h in range(2): scale_pack(2 + h, T, KP + h*6 + 2 + 2*T)
            for h in range(2): scale_pack(4 + h, T, VPb[h] + 2 + 2*T)
        if ps == 0:
            self.fq += self.unit_reads(0, 2) + self.unit_reads(1, 0)
        lv, le = a.label("L_hv"), a.label("L_he")
        a(f"s_cmp_ge_u32 {sW}, 2\ns_cbranch_scc1 {lv}")
        save = (list(a.vm), list(a.lg), list(self.fq))
        per = 3
        HC = A0 + 32 if ps == 1 else HX
        for var in range(2):
            a.vm, a.lg, self.fq = list(save[0]), list(save[1]), list(save[2])
            for k in range(16):
                a.wait(lg=f"hx{k}")
                W_, A_ = vr(hw(k)), vr(HX + (k % 4)*4)
                c = "0" if k == 0 else vr(HA)
                a(f"{MF} {vr(HA)}, {W_}, {A_}, {c}" if var == 0 else f"{MF} {vr(HA)}, {A_}, {W_}, {c}")
                if k + 3 < 16: hx_read(k + 3)
                self.fill(per)
            if var == 0: a(f"s_branch {le}\n{lv}:\ns_nop 1")
            else: a(f"{le}:")
        self.flush()
        a.wait(lg="tsr")
        lv, le = a.label("L_hv"), a.label("L_he")
        a(f"s_bitcmp0_b32 {sW}, 0\ns_cselect_b64 vcc, -1, 0\ns_cmp_ge_u32 {sW}, 2\ns_cbranch_scc1 {lv}")
        for r in range(4): a(f"v_accvgpr_read_b32 v{HX+r}, a{248+r}\nv_accvgpr_read_b32 v{HX+4+r}, a{252+r}")
        for r in range(4): a(f"v_cndmask_b32 v{HX+r}, v{HX+4+r}, v{HX+r}, vcc")
        for r in range(4): a(f"v_fmac_f32 v{HA+r}, v{HX+r}, v{ST+5}")
        for r in range(4): a(f"v_mul_f32 v{HA+r}, v{HA+r}, v{ST+4}")
        a(f"s_branch {le}\n{lv}:")
        a(f"v_cndmask_b32 v{HX}, v{vCSV+1}, v{vCSV}, vcc")
        for r in range(4): a(f"v_fmac_f32 v{HA+r}, v{MT+8+r}, v{HX}")
        for r in range(4): a(f"v_mul_f32 v{HA+r}, v{HA+r}, v{RT+8+r}")
        a(f"{le}:")
        HP = vTMP + 2
        a(f"v_cvt_pk_bf16_f32 v{HP}, v{HA}, v{HA+1}\nv_cvt_pk_bf16_f32 v{HP+1}, v{HA+2}, v{HA+3}")
        KVP = 4*KB
        a(f"s_lshl_b32 {sT[4]}, {sW}, 9\ns_add_u32 {sT[4]}, {sT[4]}, {L_Z + KVP}\nv_lshl_add_u32 v{vTMP+1}, {vL}, 3, {sT[4]}")
        a(f"ds_write_b64 v{vTMP+1}, {vr(HP, 2)}")
        a(f"s_add_u32 {sT[4]}, {sPAGE}, {KVP}\nv_lshl_add_u32 v{vTMP}, {vL}, 3, {sT[4]}")
        l = a.label("L_nx")
        a(f"s_cmp_eq_u32 {sW}, 3\ns_cbranch_scc1 {l}")
        for h in range(2):
            a(f"ds_write_b64 v{vTMP}, {vr(KP + h*6 + 4, 2)} offset:{PAGE + h*512}")
            a(f"ds_write_b64 v{vTMP}, {vr(VPb[h] + 4, 2)} offset:{PAGE + 1024 + h*512}")
        a(f"{l}:")
        units = [(h, T) for T in (1, 0) for h in range(2)]
        SC = A0
        def sc_cur(u):
            h, T = units[u]; a(f"{MF16} {vr(SC + u*8)}, {vr(KP + h*6 + 2 + T*2, 2)}, {vr(QPb(h, T), 2)}, {vr(CM)}")
        def sc_prev(u):
            h, T = units[u]; a(f"{MF16} {vr(SC + u*8 + 4)}, {vr(KP + h*6 + T*2, 2)}, {vr(QPb(h, T), 2)}, {vr(CM + (8 if T == 0 else 4))}")
        for u in range(2): sc_cur(u); sc_prev(u)
        for u in (2, 3): sc_cur(u)
        cexp = 0.25 * LOG2E
        CQ = X32
        for T in range(2): a(f"v_mul_f32 v{CQ+T}, {f32(cexp)}, v{ST+2*T}")
        self.stamp("p1.preB")
        a("s_waitcnt lgkmcnt(0)\ns_barrier"); a.lg = []
        for h in range(2): a.lds(f"ds_read_b64 {vr(KP + h*6, 2)}, v{vTMP} offset:{h*512}", "kp")
        for h in range(2): a.lds(f"ds_read_b64 {vr(VPb[h], 2)}, v{vTMP} offset:{1024 + h*512}", "vp")
        if ps == 0: self.run(self.unit_items(2, 2) + self.unit_items(3, 0))
        MX = X32 + 4
        def mx(u):
            for r in range(4): a(f"v_max_f32 v{SC+u*8+r}, v{SC+u*8+r}, v{SC+u*8+4+r}")
            a(f"v_max3_f32 v{MX+u}, v{SC+u*8}, v{SC+u*8+1}, v{SC+u*8+2}")
            a(f"v_max_f32 v{MX+u}, v{MX+u}, v{SC+u*8+3}")
        mx(0)
        a.wait(lg="kp")
        for u in (2, 3): sc_prev(u)
        mx(1)
        a(f"s_mul_i32 {sT[3]}, {sW}, {2*HT}\ns_lshl_b32 {sT[4]}, {sC}, 10")
        a(f"v_permlane16_swap_b32 v{MX}, v{MX+1}")
        a.wait(lg="vp")
        if ps == 0: self.run(self.unit_items(4, 1))
        mx(2); mx(3)
        a(f"v_max_f32 v{MX}, v{MX}, v{MX+1}\ns_add_u32 {sT[3]}, {sT[3]}, {sT[4]}")
        a(f"v_permlane16_swap_b32 v{MX+2}, v{MX+3}")
        a(f"v_max_f32 v{MX+2}, v{MX+2}, v{MX+3}\ns_add_u32 {sT[3]}, {sT[3]}, {sWR}\ns_add_u32 {sT[3]}, {sT[3]}, {O_H}")
        a(f"v_permlane32_swap_b32 v{MX}, v{MX+2}")
        a(f"v_max_f32 v{MX}, v{MX}, v{MX+2}")
        a(f"v_mov_b32 v{MX+2}, v{MX}\ns_add_u32 {sT[4]}, {sT[3]}, {HT}")
        a(f"v_permlane32_swap_b32 v{MX}, v{MX+2}")
        a(f"v_mov_b32 v{MX+1}, v{MX}\nv_mov_b32 v{MX+3}, v{MX+2}")
        a(f"v_permlane16_swap_b32 v{MX}, v{MX+1}\nv_permlane16_swap_b32 v{MX+2}, v{MX+3}")
        for u in range(4): a(f"v_mul_f32 v{MX+u}, v{MX+u}, v{CQ + units[u][1]}")
        OA = ACC + 16
        for u, (h, T) in enumerate(units):
            b = SC + u*8
            for r in range(4): a(f"v_fma_f32 v{b+r}, v{b+r}, v{CQ+T}, -v{MX+u}")
        def pv_valu(u):
            b = SC + u*8
            a(f"v_cvt_pk_bf16_f32 v{b}, v{b}, v{b+1}\nv_cvt_pk_bf16_f32 v{b+1}, v{b+2}, v{b+3}")
            for p in range(2): a(f"v_and_b32 v{b+4+p}, v{CM+12+p}, v{b+p}\nv_bfi_b32 v{b+6+p}, v{CM+12+p}, 0, v{b+p}")
        def pv_mfma(u):
            h, T = units[u]; b = SC + u*8; o = OA + u*8
            a(f"{MF} {vr(o + 4)}, {vr(ONES)}, {vr(b + 4)}, 0")
            a(f"{MF} {vr(o)}, {vr(VPb[h] + T*2)}, {vr(b + 4)}, 0")
        ex = lambda u: a("\n".join(f"v_exp_f32 v{SC+u*8+r}, v{SC+u*8+r}" for r in range(4)))
        ex(0); ex(1); pv_valu(0); ex(2); pv_mfma(0); pv_valu(1); ex(3); pv_mfma(1); pv_valu(2); pv_valu(3); pv_mfma(2); pv_mfma(3)
        OF = X32 + 8
        for u, (h, T) in enumerate(units):
            b = OA + u*8
            a(f"v_rcp_f32 v{b+4}, v{b+4}")
            if u:
                pb = OA + (u-1)*8
                for r in range(4): a(f"v_mul_f32 v{pb+r}, v{pb+r}, v{pb+4}")
                ph_, pT = units[u-1]
                for p in range(2): a(f"v_cvt_pk_bf16_f32 v{OF + pT*4 + ph_*2 + p}, v{pb+2*p}, v{pb+2*p+1}")
        b = OA + 24; h, T = units[3]
        for r in range(4): a(f"v_mul_f32 v{b+r}, v{b+r}, v{b+4}")
        for p in range(2): a(f"v_cvt_pk_bf16_f32 v{OF + T*4 + h*2 + p}, v{b+2*p}, v{b+2*p+1}")
        self.store2([f"buffer_store_dwordx4 {vr(OF + 4*T)}, {vL16}, {WS}, {sT[3+T]} offen" for T in (1, 0)])
        self.stamp("p1.stored")
        self.narrow_prep(ps, 2)
        if ps == 0: self.run(self.unit_reads(2, 2) + self.unit_reads(3, 0) + self.unit_reads(4, 1))
        self.flag(sFLA, ps*4 + 1)
        self.stamp("p1.flag")
        if ps == 0:
            a.wait(lg="all")
            for u in range(5, 5 + self.c.hop1_units): self.run(self.unit_items(u, u % 3))

    def census(self, r):
        a = self.a
        lp, lc, ld = a.label("L_cen"), a.label("L_cenc"), a.label("L_cend")
        keep_after = None
        a(f"s_mov_b32 {sSPIN}, 0")
        a.wait(vm="cen")
        a(f"{lc}:")
        a(f"v_readfirstlane_b32 {sT[5]}, v{r}\nv_readfirstlane_b32 {sT[6]}, v{r+1}\nv_readfirstlane_b32 {sT[7]}, v{r+3}")
        a(f"s_and_b32 {sT[6]}, {sT[6]}, {sT[7]}\ns_lshl_b32 {sT[6]}, {sT[6]}, 4\ns_and_b32 {sT[6]}, {sT[6]}, {sT[5]}")
        a(f"s_cbranch_scc1 {ld}")
        a(f"v_mov_b32 v{vTMP+4}, 0")
        a(f"buffer_load_dwordx2 {vr(r, 2)}, v{vTMP+4}, {DBG}, {sT[9]} offen sc1")
        a(f"buffer_load_dwordx2 {vr(r+2, 2)}, v{vTMP+4}, {DBG}, {sT[8]} offen sc1")
        a("s_waitcnt vmcnt(0)")
        a(f"s_add_u32 {sSPIN}, {sSPIN}, 1\ns_cmp_lt_u32 {sSPIN}, {self.c.spin_max}\ns_cbranch_scc1 {lc}")
        a(f"{ld}:")
        a(f"s_lshl_b32 {sT[6]}, {sCEN}, 4\ns_cmp_lg_u32 {sT[5]}, {sT[6]}\ns_cselect_b32 {sSLOW}, 1, {1 if self.c.force_slow else 0}")
        a(f"s_lshl_b32 {sSTEP}, {sSLOW}, 23\ns_mov_b32 {sWR}, {sRB0}")

    N_A0 = VB; N_AC = VB + 64; N_OWN = VB + 96; N_PS = VB + 112; N_LOC = VB + 176

    def narrow_prep(self, ps, which):
        a = self.a
        nks = 4 if which == 2 else 11
        ph = ps*4 + which
        OWN, LOC = self.N_OWN, self.N_LOC
        if ph > 2:
            for p in range(2): a(f"v_permlane16_swap_b32 v{XR+4*p}, v{XR+4*p+2}\nv_permlane16_swap_b32 v{XR+4*p+1}, v{XR+4*p+3}")
        for i in range(8): a(f"v_lshlrev_b32 v{OWN+2*i}, 16, v{XR+i}\nv_and_b32 v{OWN+2*i+1}, 0xffff0000, v{XR+i}")
        self.next_arena()
        a(f"s_mul_i32 {sT[9]}, {sW}, {nks*KB}\ns_add_u32 {sT[9]}, {sT[9]}, {sRD}\ns_add_u32 {sT[9]}, {sT[9]}, {O_H}\ns_lshl_b32 {sT[10]}, {sMH}, 2")
        for s in range(4):
            a(f"s_add_u32 {sT[s]}, {sW}, {s+1}\ns_and_b32 {sT[s]}, {sT[s]}, 3")
            if s < 3: a(f"s_mul_i32 {sT[8]}, {sT[s]}, {PAGE}\ns_add_u32 {sT[8]}, {sT[8]}, {L_Z + s*4*KB}\nv_add_u32 v{vTMP+3+s}, {sT[8]}, {vL16}")
            a(f"s_add_u32 {sT[s]}, {sT[s]}, {sT[10]}\ns_mul_i32 {sT[s]}, {sT[s]}, {HT}\ns_add_u32 {sT[s]}, {sT[s]}, {sT[9]}")
        a(f"s_cmp_eq_u32 {sW}, 3\ns_cselect_b32 {sT[9]}, {KB}, 0")
        a(f"v_bfe_u32 v{LOC}, {vL}, 2, 1\nv_and_b32 v{LOC+1}, 12, {vPB}\nv_lshl_or_b32 v{LOC}, v{LOC}, 6, v{LOC+1}")
        a(f"v_add_u32 v{LOC+1}, {sPAGE}, {vL16}")
        if ph == 8:
            a(f"s_lshl_b32 {sT[5]}, {sMT}, 15\ns_add_u32 {sT[5]}, {sT[5]}, {sROW}\ns_lshl_b32 {sT[6]}, {sNB}, 7\ns_add_u32 {sT[5]}, {sT[5]}, {sT[6]}\ns_add_u32 {sT[6]}, {sT[5]}, {16*KB}")
            W0 = LOC + 2
            a(f"s_add_u32 {sT[7]}, {sW3K}, {L_E}")
            a(f"v_mul_u32_u24 v{W0}, 36, {vPB}\nv_lshrrev_b32 v{W0+1}, 1, {vG16}\nv_add3_u32 v{W0}, v{W0}, v{W0+1}, {sT[7]}")
            a(f"v_lshrrev_b32 v{W0+2}, 3, {vL}\nv_and_b32 v{W0+3}, 0x70, {vL16}")
            a(f"v_mul_u32_u24 v{W0+1}, 144, v{W0+2}\nv_add3_u32 v{W0+1}, v{W0+1}, v{W0+3}, {sT[7]}\nv_lshl_or_b32 v{W0+2}, v{W0+2}, 11, v{W0+3}")
        else:
            a(f"s_lshl_b32 {sT[5]}, {sMT}, 14\ns_lshl_b32 {sT[11]}, {sNB}, 11\ns_add_u32 {sT[5]}, {sT[5]}, {sT[11]}\ns_add_u32 {sT[5]}, {sT[5]}, {sWR}")
            a(f"s_lshl_b32 {sT[6]}, {sMT}, 10\ns_lshl_b32 {sT[12]}, {sNB}, 7\ns_add_u32 {sT[6]}, {sT[6]}, {sT[12]}\ns_add_u32 {sT[6]}, {sT[6]}, {sWR}\ns_add_u32 {sT[6]}, {sT[6]}, {O_ST}")
            a(f"v_bfe_u32 v{LOC+2}, {vL}, 4, 1\nv_lshrrev_b32 v{LOC+3}, 5, {vL}\nv_lshl_or_b32 v{LOC+2}, v{LOC+2}, 1, v{LOC+3}")
            a(f"v_lshlrev_b32 v{LOC+3}, 2, {vPB}\nv_lshl_or_b32 v{LOC+2}, v{LOC+2}, 8, v{LOC+3}\nv_lshlrev_b32 v{LOC+3}, 1, {vPB}")

    def narrow(self, ps, which):
        a = self.a
        nks = 4 if which == 2 else 11
        wb = 0 if which == 2 else 64
        ph = ps*4 + which
        last = (ph == 8)
        RING = 16
        A0, AC, OWN, PS, LOC = self.N_A0, self.N_AC, self.N_OWN, self.N_PS, self.N_LOC
        self.poll(f"v{LOC}", sPLA, ph - 1)
        self.stamp(f"p{which}.polled")
        N = 4*nks
        def lda(f):
            if f >= N: return
            s, j = divmod(f, nks)
            if j and j % 4 == 0: a(f"s_add_u32 {sT[s]}, {sT[s]}, 4096")
            if j == 10: a(f"s_sub_u32 {sT[s]}, {sT[s]}, {sT[9]}")
            a.vmem(f"buffer_load_dwordx4 {vr(A0 + (f % RING)*4)}, {vL16}, {WS}, {sT[s]} offen offset:{(j%4)*KB} sc1", f"a{f}")
        PD = self.c.NPD
        for f in range(PD): lda(f)
        if ps == 0:
            us = range(5, 5 + self.c.hop1_units) if which == 2 else self.tail_units
            for u in us: self.run(self.unit_reads(u, u % 3))
            a.wait(lg="all")
            if which == 4:
                l = a.label("L_z")
                a(f"s_cmp_lg_u32 {sW}, 3\ns_cbranch_scc1 {l}")
                for i in range(16): a(f"v_accvgpr_write_b32 a{14*16+i}, 0")
                a(f"{l}:\ns_nop 1")
        if ph != 8: a("s_barrier")
        for f in range(N):
            s, j = divmod(f, nks)
            a.wait(vm=f"a{f}")
            d0 = OWN if s == 3 else AC + (s % 2)*16
            for t in range(4):
                d = d0 + t*4
                c = "0" if (j == 0 and s < 3) else vr(d)
                a(f"{MF} {vr(d)}, {ar(wb + j*16 + t*4)}, {vr(A0 + (f % RING)*4)}, {c}")
                if t == 0 and f + PD < N: lda(f + PD)
                else: self.fill(2)
            if j == 0 and s > 0:
                pd = AC + ((s-1) % 2)*16
                for t in range(4):
                    self.F(lambda t=t, pd=pd, s=s: a.lds(f"ds_write_b128 v{vTMP+3+s-1}, {vr(pd + t*4)} offset:{t*KB}", "pw"))
            if s == 3 and j == 1:
                self.flush()
                a.wait(lg="all")
                a("s_barrier")
                for i in range(12):
                    self.F(lambda i=i: a.lds(f"ds_read_b128 {vr(PS + i*4)}, v{LOC+1} offset:{i*KB}", f"pr{i}"))
                if which == 4:
                    self.F(lambda: a.wait(lg="pr7"))
                    for i in range(16): self.F(f"v_add_f32 v{PS+i}, v{PS+i}, v{PS+16+i}")
                    self.F(lambda: a.wait(lg="all"))
                    for i in range(16): self.F(f"v_add_f32 v{PS+i}, v{PS+i}, v{PS+32+i}")
                elif ps == 0: self.fq += self.chunk_items("1", 0, RSLOT[0])
            if which == 2 and ps == 1 and f == 8:
                for c in range(self.c.w1_at_A, 8): self.fq += self.chunk_items("1", c, c*PAGE)
        self.flush()
        self.stamp(f"p{which}.main")
        if which == 2:
            a.wait(lg="pr7")
            for i in range(8): a(f"v_pk_add_f32 {vr(PS+2*i, 2)}, {vr(PS+2*i, 2)}, {vr(PS+16+2*i, 2)}")
            a.wait(lg="all")
            for i in range(8): a(f"v_pk_add_f32 {vr(OWN+2*i, 2)}, {vr(OWN+2*i, 2)}, {vr(PS+32+2*i, 2)}")
        for i in range(8): a(f"v_pk_add_f32 {vr(OWN+2*i, 2)}, {vr(OWN+2*i, 2)}, {vr(PS+2*i, 2)}")
        for i in range(8): a(f"v_cvt_pk_bf16_f32 v{XR+i}, v{OWN+2*i}, v{OWN+2*i+1}")
        if last:
            W0 = LOC + 2
            for t in range(4): a.lds(f"ds_write_b64 v{W0}, {vr(XR + 2*t, 2)} offset:{t*32}")
            for i in range(2): a.lds(f"ds_read_b128 {vr(AC + 4*i)}, v{W0+1} offset:{i*8*144}", f"o{i}")
            for i in range(2):
                a.wait(lg=f"o{i}")
                a.vmem(f"buffer_store_dwordx4 {vr(AC + 4*i)}, v{W0+2}, {OUT}, {sT[5+i]} offen")
            return
        S = AC
        for p in range(2):
            a(f"{MF} {vr(S+4)}, {vr(XR+4*p)}, {vr(XR+4*p)}, {'0' if p == 0 else vr(S+4)}")
            a(f"{MF} {vr(S)}, {vr(ONES)}, {vr(XR+4*p)}, {'0' if p == 0 else vr(S)}")
        for p in range(2): a(f"v_permlane16_swap_b32 v{XR+4*p}, v{XR+4*p+2}\nv_permlane16_swap_b32 v{XR+4*p+1}, v{XR+4*p+3}")
        self.store2([f"buffer_store_dwordx4 {vr(XR+4*p)}, v{LOC+2}, {WS}, {sT[5]} offen offset:{p*KB}" for p in range(2)])
        a(f"v_cndmask_b32 v{S+4}, v{S+4}, v{S+5}, {mL1}\nv_cndmask_b32 v{S+6}, v{S+6}, v{S+7}, {mL3}\ns_or_b64 vcc, {mL2}, {mL3}")
        a(f"v_cndmask_b32 v{S+1}, v{S+4}, v{S+6}, vcc")
        a(f"s_mov_b64 exec, {mDG}")
        self.store2([f"buffer_store_dwordx2 {vr(S, 2)}, v{LOC+3}, {WS}, {sT[6]} offen"])
        a("s_mov_b64 exec, -1")
        self.stamp(f"p{which}.stored")
        if which == 2: self.p3_prep(ps)
        else: self.p1_prep()
        self.flag(sFLB, ph)
        self.stamp(f"p{which}.flag")
        if ph == 4:
            l = a.label("L_nhp")
            a(f"s_cmp_lg_u32 {sMT}, 7\ns_cbranch_scc1 {l}")
            for p in range(2): a(f"buffer_store_dwordx4 {vr(XR+4*p)}, v{LOC+2}, {WS}, {sH1} offen offset:{p*KB} sc1")
            a(f"s_mov_b64 exec, {mDG}\nbuffer_store_dwordx2 {vr(S, 2)}, v{LOC+3}, {WS}, {sH2} offen sc1")
            a(f"s_mov_b64 exec, -1\n{l}:\ns_nop 1")

    P3_A0 = VB; P3_ACC = VB + 64; P3_WF = VB + 112; P3_CS = VB + 144; P3_BI = VB + 168; P3_ST = VB + 192

    def p3_prep(self, ps):
        a = self.a
        CS, ST = self.P3_CS, self.P3_ST
        sA0, sA1 = sT[0], sT[1]
        self.next_arena()
        a(f"s_lshl_b32 {sA0}, {sW}, 15\ns_add_u32 {sA0}, {sA0}, {sRD}\ns_add_u32 {sA1}, {sA0}, {16*KB}")
        a(f"s_lshl_b32 {sT[2]}, {sW}, 11\ns_add_u32 {sT[2]}, {sT[2]}, {sRD}\ns_add_u32 {sT[2]}, {sT[2]}, {O_ST}")
        a(f"s_mul_i32 {sT[8]}, {sW}, {2*HT}\ns_lshl_b32 {sT[9]}, {sP0}, 10\ns_add_u32 {sT[8]}, {sT[8]}, {sT[9]}")
        a(f"s_add_u32 {sT[8]}, {sT[8]}, {sWR}\ns_add_u32 {sT[8]}, {sT[8]}, {O_H}\ns_add_u32 {sT[9]}, {sT[8]}, {HT}")
        a(f"v_add_u32 v{vTMP+5}, {L_CS1}, {vG16}")
        a(f"s_and_b32 {sT[4]}, {sC}, 3\ns_cmp_eq_u32 {sT[4]}, 3\ns_cselect_b32 {sT[4]}, 0x40000000, 0\nv_add_u32 v{ST+4}, {sT[4]}, {vL16}")
        a(f"s_cmp_eq_u32 {sC}, 15\ns_cselect_b32 {sT[4]}, 0x40000000, 0\nv_add_u32 v{ST+5}, {sT[4]}, {vL16}")
        if ps == 0:
            self.cs_addr(CS + 12, vR0, 6)
        else:
            for j in range(6): a.lds(f"ds_read_b128 {vr(CS + j*4)}, v{vTMP+5} offset:{j*64}", "cs")

    def p3(self, ps):
        a = self.a
        ph = ps*4 + 3
        A0, ACC, WF, CS, BI, ST = self.P3_A0, self.P3_ACC, self.P3_WF, self.P3_CS, self.P3_BI, self.P3_ST
        STL = BI
        CW = CS; CA = CS + 12
        SA = 208
        areg = lambda ks, T: A0 + ((ks % 8)*2 + T)*4
        acc = lambda j, T: ACC + (j*2 + T)*4
        def blk(ks, p, h, t):
            o = ((ks & 1)*2 + h)*3*KB + p*64
            if ps == 0: return (vR0, vR1)[t], RSLOT[ks // 2] - 96*KB + o
            ad = (ks // 2)*PAGE + o
            return ((vR0, vR1)[t], ad) if ad < 48*KB else ((vZ0, vZ1)[t], ad - 48*KB)
        sA0, sA1 = sT[0], sT[1]
        nh = self.c.hop2_chunks
        lda = self.a_loader(areg, sA0, sA1)
        a("s_barrier")
        if ps == 0:
            for c in range(1, 1 + nh): self.run(self.chunk_items("1", c, RSLOT[c]))
            a(f"s_lshl_b32 {sT[3]}, {sP0}, 6\nv_lshlrev_b32 v{vTMP+3}, 1, {vL}")
            a.vmem(f"buffer_load_short_d16_hi v{ST}, v{vTMP+3}, {B1}, {sT[3]} offen")
            a.vmem(f"buffer_load_short_d16_hi v{ST+1}, v{vTMP+3}, {B1}, {sT[3]} offen offset:128")
        def between():
            self.poll(vPB, sPLB, ph - 1)
            self.stamp("p3.polled")
            for ks in range(self.c.PD0): self.run(lda[ks])
            if ps == 0:
                a(f"v_and_b32 v{ST}, 0xffff0000, v{ST}\nv_and_b32 v{ST+1}, 0xffff0000, v{ST+1}")
                a(f"v_lshlrev_b32 v{vTMP}, 2, {vL}\nv_add_u32 v{vTMP}, {L_BI}, v{vTMP}")
                a.lds(f"ds_write2_b32 v{vTMP}, v{ST}, v{ST+1} offset0:0 offset1:64")
        sync = list(self.c.p3_sync) if ps == 0 else []
        pend = list(range(1 + nh, 8)) if ps == 0 else []
        free_after = {5: 1, 6: 3, 7: 5}
        state = {"bar": -1}
        def cw_F(c):
            for i in range(3):
                for h in range(2):
                    self.F(lambda i=i, h=h: a.lds(f"ds_read_b64_tr_b16 {vr(CW + i*4 + 2*h, 2)}, v{CA+i} offset:{RSLOT[c] - 96*KB + h*3*KB}", "cw"))
        def pre_k(ks):
            if ks in sync:
                nxt = [s for s in sync if s > ks]
                hi = 7 if not nxt else (nxt[0] + 1)//2 - 1
                assert all(c not in pend for c in range(hi + 1)), (ks, pend)
                self.flush()
                a.wait(vm=f"c{hi}")
                a("s_barrier")
                state["bar"] = ks
            if ks == 10: self.flush()
            self.fq[0:0] = self.a_sched(lda, ks)
            if ks == 2:
                for T in range(2):
                    for n in range(2):
                        self.F(lambda T=T, n=n: a.vmem(f"buffer_load_dwordx2 {vr(STL + T*4 + n*2, 2)}, {vSTL}, {WS}, {sT[2]} offen offset:{T*KB + n*128} sc1", "stl"))
            if pend and (ks % 2 == 1 or ks == 0) and free_after.get(pend[0], -2) < state["bar"]:
                c = pend.pop(0); self.fq += self.chunk_items("1", c, RSLOT[c])
            if ps == 0:
                if ks == 0: cw_F(0)
                elif ks % 2 == 1 and ks < 15: cw_F((ks + 1)//2)
            if ks == (12 if ps == 0 else 6):
                self.F(lambda: a.wait(vm="stl"))
                for T in range(2):
                    self.F(f"v_add_f32 v{ST+2*T}, v{STL+4*T}, v{STL+4*T+2}\nv_add_f32 v{ST+2*T+1}, v{STL+4*T+1}, v{STL+4*T+3}")
                self.F2(self.stats_text(ST, vTMP), self.stats_text(ST + 2, vTMP + 1))
            if ks == 14:
                for j in range(6): self.F(lambda j=j: a.lds(f"ds_read_b128 {vr(BI + j*4)}, v{vTMP+5} offset:{512 + j*64}", "bi"))
            if ks == 15 and ps == 0: self.cs_publish_F(SA, vTMP)
        def post_frag(ks, j):
            if ps == 1 and ks in (10, 11, 12, 13):
                jj = (j + 3) % 6; r = ks - 10
                for T in range(2): a(f"v_fmac_f32 v{acc(jj, T) + r}, v{CS + jj*4 + r}, v{ST + 2*T + 1}")
            if ps == 0:
                if j == 5 and (ks == 0 or ks % 2 == 1): self.flush()
                if ks % 2 == 0 and j == (5 if ks == 0 else 2):
                    a.wait(lg="cw")
                    for i in range(3):
                        a(f"{MF} {ar(SA + i*4)}, {vr(ONES)}, {vr(CW + i*4)}, {'0' if ks == 0 else ar(SA + i*4)}")
                        self.fill(2)
        self.wide(blk, areg, ACC, WF, pre_k, False, post_frag, rate=lambda f: 1 if (ps == 1 and 60 <= f < 84) else 2, between=between)
        self.flush()
        self.stamp("p3.main")
        rest = list(range(5 + self.c.hop1_units, 15))
        r1, r2, self.tail_units = rest[:3], rest[3:6], rest[6:]
        assert len(self.tail_units) <= 3
        if ps == 0:
            a(f"v_add_u32 v{vTMP+4}, {L_CSP}, {vG16}")
            a.wait(lg="all")
            a("s_barrier")
            CS2 = A0
            for j in range(6):
                a.lds(f"ds_read_b128 {vr(CS + j*4)}, v{vTMP+4} offset:{j*64}", "cs")
                a.lds(f"ds_read_b128 {vr(CS2 + j*4)}, v{vTMP+4} offset:{384 + j*64}", "cs")
            for u in r1: self.run(self.unit_items(u, u % 3))
            a.wait(lg="all")
            for i in range(12): a(f"v_pk_add_f32 {vr(CS+2*i, 2)}, {vr(CS+2*i, 2)}, {vr(CS2+2*i, 2)}")
            for j in range(6): a.lds(f"ds_write_b128 v{vTMP+5}, {vr(CS + j*4)} offset:{j*64}")
            for T in range(2):
                for j in range(6):
                    for q in range(2):
                        b = acc(j, T) + 2*q
                        a(f"v_pk_fma_f32 {vr(b, 2)}, {vr(CS + j*4 + 2*q, 2)}, {vr(ST + 2*T, 2)}, {vr(b, 2)} op_sel:[0,1,0] op_sel_hi:[1,1,1]")
        a.wait(lg="bi")
        HF = WF
        TT = A0
        for T in range(2):
            st = vr(ST + 2*T, 2)
            regs = []
            for j in range(6):
                for q in range(2):
                    regs.append((acc(j, T) + 2*q, BI + j*4 + 2*q, TT + (j*2 + q)*2, HF + (T*3 + j//2)*4 + (j % 2)*2 + q))
            for (ac, bi, e, o) in regs: a(f"v_pk_fma_f32 {vr(ac, 2)}, {vr(ac, 2)}, {st}, {vr(bi, 2)} op_sel_hi:[1,0,1]")
            for (ac, bi, e, o) in regs: a(f"v_pk_mul_f32 {vr(e, 2)}, {vr(ac, 2)}, {sLG}")
            for (ac, bi, e, o) in regs: a(f"v_exp_f32 v{e}, v{e}\nv_exp_f32 v{e+1}, v{e+1}")
            for (ac, bi, e, o) in regs: a(f"v_pk_fma_f32 {vr(e+24, 2)}, {vr(e, 2)}, 0.5, 1.0 op_sel_hi:[1,0,0]")
            for (ac, bi, e, o) in regs: a(f"v_pk_fma_f32 {vr(e, 2)}, {vr(e, 2)}, {vr(e+24, 2)}, 1.0 op_sel_hi:[1,1,0]")
            for (ac, bi, e, o) in regs: a(f"v_rcp_f32 v{e}, v{e}\nv_rcp_f32 v{e+1}, v{e+1}")
            if ps == 0 and T == 0:
                for u in r1: self.run(self.unit_reads(u, u % 3))
            for (ac, bi, e, o) in regs: a(f"v_pk_fma_f32 {vr(ac, 2)}, {vr(ac, 2)}, {vr(e, 2)}, {vr(ac, 2)} neg_lo:[1,0,0] neg_hi:[1,0,0]")
            for (ac, bi, e, o) in regs: a(f"v_cvt_pk_bf16_f32 v{o}, v{ac}, v{ac+1}")
            self.store2([f"buffer_store_dwordx4 {vr(HF + (T*3 + p)*4)}, {('v%d' % (ST+4), 'v%d' % (ST+5), vL16)[p]}, {WS}, {sT[8+T]} offen offset:{p*KB}" for p in range(3)])
            if ps == 0 and T == 0:
                a.wait(lg="all")
                for u in r2: self.run(self.unit_items(u, u % 3))
        self.stamp("p3.stored")
        self.narrow_prep(ps, 4)
        if ps == 0:
            for u in r2: self.run(self.unit_reads(u, u % 3))
        self.flag(sFLA, ph)
        self.stamp("p3.flag")
        if ps == 0:
            a.wait(lg="all")
            for u in self.tail_units: self.run(self.unit_items(u, u % 3))

    def build(self):
        a = self.a
        self.cold = []
        for ps in range(2):
            self.p1(ps)
            self.narrow(ps, 2)
            self.p3(ps)
            self.narrow(ps, 4)
        self.stamp("end")
        if self.c.stamps:
            a(f"s_memrealtime {sSTMP}\ns_waitcnt lgkmcnt(0)\nv_writelane_b32 {vSTAMP}, s86, 63")
            a(f"s_lshl_b32 {sT[0]}, s2, 2\ns_add_u32 {sT[0]}, {sT[0]}, {sW}\ns_lshl_b32 {sT[0]}, {sT[0]}, 8\ns_add_u32 {sT[0]}, {sT[0]}, {O_STAMP}")
            a(f"v_lshlrev_b32 v{vTMP}, 2, {vL}")
            a(f"buffer_store_dword {vSTAMP}, v{vTMP}, {WS}, {sT[0]} offen")
        if self.c.dbgstamps:
            a(f"s_or_b32 {sT[0]}, s2, {sW}\ns_cmp_lg_u32 {sT[0]}, 0\ns_cbranch_scc1 L_end")
            a(f"v_lshlrev_b32 v{vTMP}, 2, {vL}\ns_mov_b64 exec, 0xcccc")
            a(f"buffer_store_dword {vSTAMP}, v{vTMP}, {DBG}, 0 offen sc1")
        a("L_end:\ns_endpgm")
        for ls, le, items in self.cold:
            a(f"{ls}:\ns_nop 7")
            for t in items: a(t + " sc1" if t.startswith("buffer_") else t)
            a(f"s_nop 1\ns_branch {le}")
        a("L_code_end:")
        head = open("cdna_kernels/" + NAME + ".s.ref").read().split("; Override launch")[0]
        head += f"; @launch grid=(256,1,1) block=(256,1,1) lds={LDS_BYTES}\n"
        head += f'.amdgcn_target "amdgcn-amd-amdhsa--gfx950"\n.text\n.globl {NAME}_kernel\n.p2align 8\n.type {NAME}_kernel,@function\n{NAME}_kernel:\n'
        tail = f'''.section .rodata,"a"
.p2align 6
.amdhsa_kernel {NAME}_kernel
  .amdhsa_next_free_vgpr 512
  .amdhsa_next_free_sgpr 100
  .amdhsa_accum_offset 256
  .amdhsa_group_segment_fixed_size 0
  .amdhsa_kernarg_size 80
  .amdhsa_user_sgpr_count 2
  .amdhsa_user_sgpr_kernarg_segment_ptr 1
  .amdhsa_system_sgpr_workgroup_id_x 1
  .amdhsa_float_denorm_mode_32 3
.end_amdhsa_kernel
'''
        return head + a.text() + tail

def make(**kw):
    c = Cfg()
    for k, v in kw.items(): setattr(c, k, v)
    g = Gen(c)
    return g.build(), g

if __name__ == "__main__":
    out = sys.argv[1] if len(sys.argv) > 1 else "cdna_kernels/" + NAME + ".s"
    import ast
    kw = dict(ast.literal_eval(sys.argv[2])) if len(sys.argv) > 2 else {}
    txt, g = make(**kw)
    open(out, "w").write(txt)
    print("instructions:", len(g.a.ins), "padded wait states:", g.a.padded)
```

```python
import re

TRANS = ("v_exp_f32", "v_log_f32", "v_rcp_f32", "v_rsq_f32", "v_sqrt_f32", "v_sin_f32", "v_cos_f32")

def regs_of(tok):
    tok = tok.strip()
    tok = tok.lstrip("-")
    m = re.fullmatch(r"abs\((.*)\)", tok)
    if m: tok = m.group(1)
    m = re.fullmatch(r"\|(.*)\|", tok)
    if m: tok = m.group(1)
    m = re.fullmatch(r"([vas])(\d+)", tok)
    if m: return {(m.group(1), int(m.group(2)))}
    m = re.fullmatch(r"([vas])\[(\d+):(\d+)\]", tok)
    if m: return {(m.group(1), i) for i in range(int(m.group(2)), int(m.group(3)) + 1)}
    if tok == "vcc": return {("s", "vcc")}
    if tok == "exec": return {("s", "exec")}
    if tok == "m0": return {("s", "m0")}
    return set()

class Ins:
    __slots__ = ("text", "op", "kind", "dst", "src", "srcC", "srcAB", "store_data", "ws")
    def __init__(self, text):
        self.text = text
        t = text.split(";")[0].strip()
        self.op = t.split()[0] if t else ""
        rest = t[len(self.op):].strip()
        ops = [o.strip() for o in rest.split(",")] if rest else []
        ops = [o.split()[0] if o and not o.startswith("hwreg") else o for o in ops]
        R = [regs_of(o) for o in ops]
        op = self.op
        self.dst = set(); self.src = set(); self.srcC = set(); self.srcAB = set(); self.store_data = set()
        self.ws = 1
        if t.endswith(":") or op.startswith("."):
            self.kind = "label"; self.ws = 0; return
        if op == "s_nop":
            self.kind = "nop"; self.ws = int(ops[0], 0) + 1; return
        if op.startswith("v_mfma"):
            self.kind = "mfma"; self.dst = R[0]; self.srcAB = R[1] | R[2]; self.srcC = R[3]; self.src = self.srcAB | self.srcC
        elif op.startswith("v_"):
            self.kind = "valu"
            if op.startswith("v_cmp"):
                self.dst = R[0]; self.src = set().union(*R[1:])
            elif op.startswith("v_permlane"):
                self.kind = "perm"; self.dst = R[0] | R[1]; self.src = R[0] | R[1]
            elif op.startswith("v_readfirstlane") or op.startswith("v_readlane"):
                self.kind = "rdlane"; self.dst = R[0]; self.src = set().union(*R[1:])
            else:
                self.dst = R[0]; self.src = set().union(*R[1:]) if len(R) > 1 else set()
                if op.startswith(("v_fmac", "v_dot2c", "v_writelane")): self.src |= R[0]
                if op.startswith("v_cndmask") and len(ops) == 3: self.src |= {("s", "vcc")}
                if op.startswith(TRANS): self.kind = "trans"
                if op.startswith("v_dot"): self.kind = "dot"; self.srcC = R[3] if len(R) > 3 else R[0]
                if "dpp" in op or "row_" in t or "quad_perm" in t: self.kind = "dpp"
        elif op.startswith("buffer_") or op.startswith("global_"):
            self.kind = "vmem"
            if " lds" in t:
                self.src = set().union(*R) | {("s", "m0")}; self.kind = "dma"
            elif "load" in op:
                self.dst = R[0]; self.src = set().union(*R[1:])
            elif op == "buffer_wbl2" or op == "buffer_inv":
                pass
            else:
                self.src = set().union(*R)
                if "x4" in op or "x3" in op: self.store_data = R[0]
        elif op.startswith("ds_"):
            self.kind = "ds"
            if "read" in op or "bpermute" in op or "swizzle" in op:
                self.dst = R[0]; self.src = set().union(*R[1:])
            else:
                self.src = set().union(*R)
        elif op.startswith("s_"):
            self.kind = "salu"
            if op.startswith(("s_cmp", "s_cbranch", "s_branch", "s_waitcnt", "s_barrier", "s_endpgm", "s_sleep", "s_setprio")):
                self.src = set().union(*R) if R else set()
            else:
                self.dst = R[0] if R else set(); self.src = set().union(*R[1:]) if len(R) > 1 else set()
        else:
            raise ValueError("unknown instr: " + text)

VALU_KINDS = ("valu", "trans", "perm", "rdlane", "dot", "dpp")

def need(p, c):
    n = 0
    pv = {r for r in p.dst if r[0] in "va"}
    ps = {r for r in p.dst if r[0] == "s"}
    if p.kind in VALU_KINDS:
        if c.kind == "mfma" and pv & c.src: n = max(n, 2)
        if c.kind in ("perm", "dpp") and pv & c.src: n = max(n, 2)
        if c.kind == "rdlane" and pv & c.src: n = max(n, 1)
        if p.kind == "trans" and c.kind in VALU_KINDS + ("mfma",) and pv & c.src: n = max(n, 1)
        if ps:
            if c.kind in VALU_KINDS and ps & c.src: n = max(n, 4 if c.kind == "rdlane" or c.op.startswith("v_writelane") else 2)
            if c.kind in ("vmem", "dma") and ps & c.src: n = max(n, 5)
            if c.kind == "salu" and ps & c.src: n = max(n, 1)
        if p.kind == "dot":
            if c.kind == "dot" and c.op == p.op:
                if pv & (c.src - c.srcC): n = max(n, 3)
            elif pv & (c.src | c.dst): n = max(n, 3)
    if p.kind == "mfma":
        if c.kind == "mfma":
            if pv & c.srcAB: n = max(n, 8)
            if pv & c.srcC and not (pv == c.srcC and c.op == p.op): n = max(n, 6)
            if pv & c.dst and not (pv & c.srcC): n = max(n, 6)
        elif c.kind in VALU_KINDS + ("vmem", "dma", "ds"):
            if pv & (c.src | c.dst): n = max(n, 8)
        if c.kind in VALU_KINDS and p.srcC & c.dst: n = max(n, 3)
    if p.kind == "vmem" and p.store_data:
        if c.kind in VALU_KINDS and p.store_data & c.dst: n = max(n, 2)
        elif p.store_data & c.dst: n = max(n, 1)
    if p.kind == "salu" and ("s", "m0") in p.dst:
        if c.kind == "dma": n = max(n, 1)
        if c.kind in VALU_KINDS and ("s", "m0") in c.src: n = max(n, 1)
    return n

class Asm:
    def __init__(self):
        self.ins = []
        self.vm = []
        self.lg = []
        self.nlabel = 0
        self.padded = 0
        self.issued = {}
        self.bg = []; self.bg_every = 0; self._bgc = 0; self._inbg = False
    def raw(self, text):
        for line in text.split("\n"):
            line = line.strip()
            if line: self._emit(line)
    __call__ = raw
    def _emit(self, line):
        c = Ins(line)
        if c.kind not in ("label", "nop"):
            dist = 0; req = 0
            for p in reversed(self.ins[-14:]):
                n = need(p, c) if p.kind not in ("label", "nop") else 0
                if n > dist: req = max(req, n - dist)
                dist += p.ws
                if dist >= 8: break
            if req:
                self.padded += req
                self.ins.append(Ins(f"s_nop {req-1}"))
        self.ins.append(c)
        if self.bg_every and self.bg and not self._inbg and c.kind in ("valu", "trans"):
            self._bgc += 1
            if self._bgc >= self.bg_every:
                self._bgc = 0; self._inbg = True
                self.bg.pop(0)()
                self._inbg = False
    def bg_flush(self):
        self.bg_every = 0
        while self.bg: self.bg.pop(0)()
    def vmem(self, text, tag=None):
        self.raw(text); self.vm.append(tag); self.issued[tag] = self.issued.get(tag, 0) + 1
        assert len(self.vm) <= 63, "vmcnt overflow"
    def lds(self, text, tag=None):
        self.raw(text); self.lg.append(tag)
    def _cnt(self, q, tag):
        idx = [i for i, t in enumerate(q) if t == tag]
        if not idx: return None
        return len(q) - 1 - idx[-1]
    def wait(self, vm=None, lg=None):
        parts = []
        if vm is not None:
            n = 0 if vm == "all" else self._cnt(self.vm, vm)
            if n is not None and (vm == "all" or len(self.vm) > n):
                parts.append(f"vmcnt({n})"); self.vm = self.vm[len(self.vm) - n:] if n else []
        if lg is not None:
            n = 0 if lg == "all" else self._cnt(self.lg, lg)
            if n is not None:
                n = min(n, 14)
                parts.append(f"lgkmcnt({n})"); self.lg = self.lg[len(self.lg) - n:] if n else []
        if parts: self.raw("s_waitcnt " + " ".join(parts))
    def label(self, base="L"):
        self.nlabel += 1
        return f"{base}_{self.nlabel}"
    def text(self):
        out = []
        for i in self.ins:
            out.append(i.text if i.kind == "label" else "    " + i.text)
        return "\n".join(out) + "\n"
```

```python
import sys, struct
from asmlib import Asm

NAME = "interleave_layers__sliding_local_dilated__dense_activation_mish__prompt"
KB = 1024

def f32(x): return "0x%08x" % struct.unpack("<I", struct.pack("<f", x))[0]

class Cfg:
    stamps = False
    force_slow = False
    dbgstamps = False
    spin_max = 1 << 17
    touch = True
    touch2_ks = 10
    tfl = ('sc1 nt', 'sc1')
    th_ks = 11
    xfl = 'nt'
    tws_ks = 14
    wt = ()
    touch_h = True
    touch_ox = True
    cen_ks = 10
    w2x = 0
    w1x = 0
    col3 = True
    vgap = 4
    vgap11 = 4
    vgap31 = 3
    r11 = 1
    x_nofill = False
    x_nord = False
    x_nold = False
    hop2_chunks = 2
    p3_sync = (1, 5, 7, 9, 11, 13)
    hop1_units = 3
    w1_at_A = 4
    w1_drain1 = 1
    w1_p2 = 3
    kstamps = ()
    LA = 6
    WE = 3
    PD0 = 2
    PD = 5
    NPD = 6
    ws_base = 0
    bg0 = 20
    nostat = False
    nobar = False
    bg1 = 14
    bg1u = 9
    bg3 = 10

X0, WQKV, WO, W1, B1, W2, OUT, DBG, WS = [f"s[{8+4*i}:{11+4*i}]" for i in range(9)]
sW, sR, sC, sMH, sNB = "s44", "s45", "s46", "s47", "s48"
sRB0   = "s49"
sRD, sWR, sSTEP = "s50", "s51", "s52"
sSLOW  = "s53"
sFLA, sFLB, sPLA, sPLB = "s54", "s55", "s56", "s57"
sROW, sP0, sCEN, sPAGE, sHAS, sW3K = "s58", "s59", "s60", "s61", "s62", "s63"
sT = [f"s{64+i}" for i in range(16)]
sD0, sD1 = "s80", "s81"
sQB, s1B = "s82", "s83"
sINV = "s84"; sSPIN = "s85"
sSTMP = "s[86:87]"
mL1, mL2, mL3, mDG = "s[88:89]", "s[90:91]", "s[92:93]", "s[94:95]"
sOB, s2B = "s96", "s97"
sLG = "s[98:99]"
sSO = "s7"
sH1, sH2, sH3, sMT = "s3", "s4", "s5", "s6"

O_X, O_ST, O_FL, O_HALO, O_H = 0, 128*KB, 136*KB, 140*KB, 160*KB
HT = 44*KB
ARENA = 8 << 20
WS_SIZE = 256 << 20
O_STAMP = 72 << 20

L_X, L_Z, L_E, L_M = 0, 96*KB, 144*KB, 156*KB
PAGE = 12*KB
L_STT = L_E + 8*KB
L_CS1 = L_M
L_BI = L_M + 512
L_CSP = L_M + 1024
L_HST = L_M + 2560
LDS_BYTES = 160*KB
RSLOT = [L_E, L_Z, L_Z + PAGE, L_Z + 2*PAGE, L_Z + 3*PAGE, L_E, L_Z, L_Z + PAGE]

vL, vL16, vT0, vT1, vT0h, vT1h, vZ0, vZ1 = [f"v{i}" for i in range(8)]
vDU = ["v8", "v9", "v10", "v11"]
vD1 = ["v12", "v13", "v14"]
vPB = "v15"
ONES = 16
XR = 20
vCSV = 28
vSTL, vSTAMP, vG16, vTH, vR0, vR1 = "v30", "v31", "v32", "v33", "v34", "v35"
vTMP = 36
VB = 42
CM = 242
DUMMY = "a239"

def vr(b, n=4): return f"v[{b}:{b+n-1}]"
def ar(b, n=4): return f"a[{b}:{b+n-1}]"
MF = "v_mfma_f32_16x16x32_bf16"
MF16 = "v_mfma_f32_16x16x16_bf16"
LOG2E = 1.4426950408889634
assert all((l * 43691) >> 19 == l // 12 for l in range(192))

class Gen:
    def __init__(self, cfg):
        self.c = cfg
        self.a = Asm()
        self.nst = 0
        self.stn = []
        self.fq = []
        self.vq = []
        self.vgap = 4; self.vlast = 99

    def stamp(self, name):
        if self.c.dbgstamps and name in ("start", "p1.main", "p1.flag", "p2.flag", "p3.flag", "p4.flag", "end"):
            slot = [2, 3, 6, 7, 10, 11, 14, 15, 18, 19, 22, 23][self.nst]
            if name == "end": slot = 15
            if self.nst < 6 or name == "end":
                self.a.wait(lg="all")
                self.a(f"s_memrealtime {sSTMP}\ns_waitcnt lgkmcnt(0)\nv_writelane_b32 {vSTAMP}, s86, {slot}")
            self.nst += 1
        if not self.c.stamps: return
        if self.c.stamps is True and name[0] in "bs" and name[1].isdigit(): return
        if self.c.stamps is not True and name not in self.c.stamps: return
        a = self.a
        a.wait(lg="all")
        a(f"s_memtime {sSTMP}\ns_waitcnt lgkmcnt(0)\nv_writelane_b32 {vSTAMP}, s86, {self.nst}")
        self.stn.append(name); self.nst += 1

    def F(self, x):
        if callable(x): self.fq.append(x)
        else:
            for line in x.split("\n"):
                if line.strip(): self.fq.append(lambda line=line: self.a(line))
    def fill(self, n=1):
        for _ in range(n):
            if self.fq: self.fq.pop(0)()
    def V(self, items, front=False):
        if callable(items): items.dma = True; items = [items]
        g = self.paced(items)
        if front: self.vq[0:0] = g
        else: self.vq += g
    def slot(self, n):
        self.vlast += 1
        if self.vq and self.vlast >= self.vgap:
            self.vq.pop(0)(); self.vlast = 0
        else: self.fill(n)
    def vflush(self):
        while self.vq: self.vq.pop(0)()
    def flush(self):
        while self.fq: self.fq.pop(0)()
    def run(self, items):
        for f in items: f()

    def m0(self, base, off):
        return lambda: self.a(f"s_add_u32 m0, {base}, {off}")
    def ld(self, voff, srd, soff, imm, tag, fl=""):
        f = lambda: self.a.vmem(f"buffer_load_dwordx4 {voff}, {srd}, {soff} offen offset:{imm} {fl} lds", tag)
        f.dma = True
        return f
    def paced(self, items):
        out, cur = [], []
        for f in items:
            cur.append(f)
            if getattr(f, "dma", False):
                out.append(lambda g=cur: self.run(g)); cur = []
        if cur: out.append(lambda g=cur: self.run(g))
        return out

    def chunk_items(self, which, c, slot, vq=None):
        stride = 3072 if which == "q" else 2752
        srd, base = (WQKV, sQB) if which == "q" else (W1, s1B)
        it = [self.m0(sW3K, slot), lambda: self.a(f"s_add_u32 {sD0}, {base}, {c*64*stride}")]
        for p in range(3): it.append(self.ld(vq if which == "q" else vD1[p], srd, sD0, p*KB, f"c{c}" if which == "q" else f"d{c}"))
        return it

    def unit_items(self, u, slot):
        srd, base, j = (WO, sOB, u) if u < 4 else (W2, s2B, u - 4)
        it = [self.m0(sPAGE, slot*4*KB), lambda: self.a(f"s_add_u32 {sD1}, {base}, {j*32*KB}")]
        if u == 14: it.append(lambda: self.a(f"s_min_u32 {sD1}, {sD1}, {42*32*KB}"))
        for i in range(4): it.append(self.ld(vDU[i], srd, sD1, i*KB, f"u{u}"))
        return it

    def unit_reads(self, u, slot):
        a = self.a
        it = [lambda: a.wait(vm=f"u{u}")]
        for h in range(2):
            for p in range(2):
                for t in range(2):
                    base = u*16 + (p*2 + t)*4 + h*2
                    it.append(lambda base=base, t=t, h=h, p=p: a.lds(f"ds_read_b64_tr_b16 {ar(base, 2)}, {(vZ0, vZ1)[t]} offset:{slot*4*KB + (h*2 + p)*KB}", f"ur{u}"))
        return it

    def store2(self, items, wt=0):
        a = self.a
        if wt in self.c.wt:
            for t in items: a.vmem(t + " sc1", "st")
            return
        ls, le = a.label("L_slow"), a.label("L_st")
        a(f"s_cmp_lg_u32 {sSLOW}, 0\ns_cbranch_scc1 {ls}")
        for t in items: a(t)
        a(f"{le}:")
        self.cold.append((ls, le, items))
        for t in items:
            if t.startswith("buffer_"): a.vm.append("st")

    def flag(self, saddr, val):
        a = self.a
        a(f"v_mov_b32 v{vTMP}, {val}\nv_mov_b32 v{vTMP+1}, 0\ns_mov_b64 exec, 1")
        a.wait(vm="st")
        self.store2([f"buffer_store_dword v{vTMP}, v{vTMP+1}, {WS}, {saddr} offen"])
        a("s_mov_b64 exec, -1")

    def poll(self, voff, sline, val):
        a = self.a
        lp, ld = a.label("L_poll"), a.label("L_got")
        a(f"s_mov_b32 {sSPIN}, 0")
        a(f"{lp}:")
        a(f"buffer_load_dword v{vTMP+2}, {voff}, {WS}, {sline} offen sc1")
        a(f"s_add_u32 {sSPIN}, {sSPIN}, 1\ns_cmp_lt_u32 {sSPIN}, {self.c.spin_max}\ns_cbranch_scc0 {ld}")
        a("s_waitcnt vmcnt(0)")
        a(f"v_cmp_gt_u32 vcc, {val}, v{vTMP+2}")
        a(f"s_cbranch_vccnz {lp}")
        a(f"{ld}:")
        a.vm = []

    def next_arena(self):
        self.a(f"s_mov_b32 {sRD}, {sWR}\ns_add_u32 {sWR}, {sWR}, {sSTEP}")

    def stats_text(self, b, t):
        return (f"v_permlane16_swap_b32 v{b}, v{b+1}\n"
                f"v_add_f32 v{b}, v{b}, v{b+1}\n"
                f"v_mov_b32 v{t}, v{b}\n"
                f"v_permlane32_swap_b32 v{b}, v{t}\n"
                f"v_add_f32 v{b}, v{b}, v{t}\n"
                f"v_mul_f32 v{b}, {sINV}, v{b}\n"
                f"v_mov_b32 v{b+1}, v{b}\n"
                f"v_permlane16_swap_b32 v{b}, v{b+1}\n"
                f"v_fma_f32 v{t}, -v{b}, v{b}, v{b+1}\n"
                f"v_max_f32 v{t}, 0, v{t}\n"
                f"v_add_f32 v{t}, {f32(1e-5)}, v{t}\n"
                f"v_sub_f32 v{b+1}, 0, v{b}\n"
                f"v_rsq_f32 v{b}, v{t}")
    def F2(self, t0, t1):
        for x, y in zip(t0.split("\n"), t1.split("\n")): self.F(x); self.F(y)

    def diag_text(self, dst, ssum, gram):
        return (f"v_cndmask_b32 v{dst+1}, v{gram}, v{gram+1}, {mL1}\n"
                f"v_cndmask_b32 v{dst+1}, v{dst+1}, v{gram+2}, {mL2}\n"
                f"v_cndmask_b32 v{dst+1}, v{dst+1}, v{gram+3}, {mL3}\n"
                f"v_cndmask_b32 v{dst}, 0, v{ssum}, {mDG}\n"
                f"v_cndmask_b32 v{dst+1}, 0, v{dst+1}, {mDG}")

    def prologue2(self):
        a = self.a
        t0, t1, t2, t3, t4 = [f"v{vTMP+i}" for i in range(5)]
        a("s_sub_u32 s16, s16, 1024\ns_subb_u32 s17, s17, 0\ns_sub_u32 s28, s28, 1024\ns_subb_u32 s29, s29, 0")
        a(f"s_lshr_b32 {sMH}, {sC}, 3\ns_and_b32 {sNB}, {sC}, 7")
        a(f"s_lshr_b32 {sT[4]}, {sC}, 2\ns_and_b32 {sT[5]}, {sC}, 3\ns_mul_i32 {sT[5]}, {sT[5]}, 3")
        a(f"s_cmp_eq_u32 {sT[4]}, 3\ns_cselect_b32 {sT[6]}, 7, 8\ns_min_u32 {sT[5]}, {sT[5]}, {sT[6]}")
        a(f"s_mul_i32 {sP0}, {sT[4]}, 11\ns_add_u32 {sP0}, {sP0}, {sT[5]}")
        a(f"s_lshl_b32 {sT[4]}, {sP0}, 6\ns_add_u32 {s1B}, {s1B}, {sT[4]}")
        a(f"s_lshl_b32 {sT[4]}, {sNB}, 7\ns_lshl_b32 {sOB}, {sW}, 17\ns_add_u32 {sOB}, {sOB}, {sT[4]}")
        a(f"s_mul_i32 {s2B}, {sW}, {11*32*KB}\ns_add_u32 {s2B}, {s2B}, {sT[4]}")
        a(f"s_lshr_b32 {sSO}, {sNB}, 1\ns_lshl_b32 {sSO}, {sSO}, 5\ns_and_b32 {sT[5]}, {sNB}, 1\ns_add_u32 {sSO}, {sSO}, {sT[5]}\ns_lshl_b32 {sSO}, {sSO}, 3")
        a(f"s_add_u32 {sH2}, {sSO}, {sRB0}\ns_add_u32 {sH2}, {sH2}, {O_HALO + 16*KB}")
        a(f"s_lshl_b32 {sH1}, {sNB}, 11\ns_add_u32 {sH1}, {sH1}, {sRB0}\ns_add_u32 {sH1}, {sH1}, {O_HALO}")
        a(f"s_lshl_b32 {sH3}, {sNB}, 2\ns_add_u32 {sH3}, {sH3}, {sRB0}\ns_add_u32 {sH3}, {sH3}, {O_FL + 256}")
        a(f"s_lshl_b32 {sMT}, {sMH}, 2\ns_add_u32 {sMT}, {sMT}, {sW}")
        a(f"s_add_u32 {sT[4]}, {sRB0}, {O_FL}")
        a(f"s_lshl_b32 {sT[5]}, {sW}, 6\ns_add_u32 {sPLB}, {sT[4]}, {sT[5]}")
        a(f"s_lshl_b32 {sT[5]}, {sC}, 2\ns_add_u32 {sFLA}, {sPLB}, {sT[5]}")
        a(f"s_lshl_b32 {sT[5]}, {sMH}, 7\ns_add_u32 {sT[4]}, {sT[4]}, {sT[5]}")
        a(f"s_lshl_b32 {sT[5]}, {sW}, 4\ns_add_u32 {sPLA}, {sT[4]}, {sT[5]}")
        a(f"s_lshl_b32 {sT[5]}, {sW}, 3\ns_add_u32 {sT[5]}, {sT[5]}, {sNB}\ns_lshl_b32 {sT[5]}, {sT[5]}, 2\ns_add_u32 {sFLB}, {sT[4]}, {sT[5]}")
        a(f"s_mov_b32 {sINV}, {f32(1/512)}")
        for m, v in ((88, 0x22222222), (90, 0x44444444), (92, 0x88888888)):
            a(f"s_mov_b32 s{m}, {v:#x}\ns_mov_b32 s{m+1}, {v:#x}")
        a("s_mov_b32 s94, 0x00f0000f\ns_mov_b32 s95, 0xf0000f00")
        a(f"s_mov_b32 s98, {f32(LOG2E)}\ns_mov_b32 s99, {f32(LOG2E)}")
        a(f"v_and_b32 {t0}, 15, {vL}\nv_lshrrev_b32 {t1}, 4, {vL}\nv_lshrrev_b32 {t2}, 2, {vL}\nv_and_b32 {t3}, 3, {vL}\nv_and_b32 {t4}, 1, {t1}")
        a(f"v_lshlrev_b32 {vL16}, 4, {vL}\nv_lshlrev_b32 {vG16}, 4, {t1}")
        a(f"v_lshlrev_b32 {vR0}, 3, {t3}\nv_lshl_or_b32 {vR0}, {t4}, 5, {vR0}")
        a(f"v_lshl_or_b32 {vT0}, {t2}, 6, {vR0}\nv_mul_u32_u24 {vR1}, 192, {t2}\nv_add_u32 {vR0}, {vR0}, {vR1}\nv_add_u32 {vR0}, {96*KB}, {vR0}\nv_xor_b32 {vR1}, 32, {vR0}")
        a(f"v_xor_b32 {vT1}, 32, {vT0}\nv_add_u32 {vT0h}, 0x10000, {vT0}\nv_add_u32 {vT1h}, 0x10000, {vT1}")
        a(f"v_add_u32 {vZ0}, {sPAGE}, {vT0}\nv_add_u32 {vZ1}, {sPAGE}, {vT1}")
        a(f"v_lshlrev_b32 {t4}, 1, {t4}\nv_xor_b32 {t3}, {t4}, {t3}\nv_lshlrev_b32 {t3}, 4, {t3}\nv_lshl_or_b32 {t3}, {t2}, 10, {t3}")
        for i in range(4): a(f"v_add_u32 {vDU[i]}, {(i >> 1)*16*KB + (i & 1)*64 - i*KB + KB}, {t3}")
        for i in range(3):
            a(f"v_add_u32 {t2}, {64*i}, {vL}\nv_mul_u32_u24 {t3}, 43691, {t2}\nv_lshrrev_b32 {t3}, 19, {t3}")
            a(f"v_mul_u32_u24 {t4}, 12, {t3}\nv_sub_u32 {t2}, {t2}, {t4}")
            a(f"v_bfe_u32 {t4}, {t3}, 2, 1\nv_lshlrev_b32 {t4}, 1, {t4}\nv_xor_b32 {t2}, {t2}, {t4}\nv_lshlrev_b32 {t2}, 4, {t2}")
            a(f"v_and_b32 {t4}, 12, {t3}\nv_add_u32 {t3}, {t3}, {t4}\nv_mul_u32_u24 {t3}, 2752, {t3}")
            a(f"v_add_u32 {vD1[i]}, {t2}, {t3}")
            if i: a(f"v_subrev_u32 {vD1[i]}, {i*KB}, {vD1[i]}")
        a(f"v_lshlrev_b32 {vPB}, 2, {t0}")
        for i in range(4): a(f"v_mov_b32 v{ONES+i}, 0x3f803f80")
        a(f"s_and_b32 {sT[4]}, {sW}, 1\ns_lshl_b32 {sT[4]}, {sT[4]}, 5\nv_xor_b32 {vTH}, {sT[4]}, {vT0}")
        a(f"s_lshr_b32 {sT[4]}, {sW}, 1\ns_add_u32 {sT[4]}, {sT[4]}, 1\ns_lshl_b32 {sT[4]}, {sT[4]}, 10\nv_add_u32 {vTH}, {sT[4]}, {vTH}")
        a(f"v_lshlrev_b32 {t1}, 2, {t1}\nv_sub_u32 {t1}, {t0}, {t1}\nv_mov_b32 {t2}, 0xff800000")
        a(f"s_or_b32 {sT[4]}, {sHAS}, {sW}\ns_cmp_lg_u32 {sT[4]}, 0\ns_cselect_b32 {sT[4]}, 0, 0xff800000")
        for r in range(4):
            a(f"v_subrev_u32 {t3}, {r}, {t1}")
            a(f"v_cmp_gt_u32 vcc, 8, {t3}\nv_cmp_gt_i32 s[70:71], -8, {t3}\nv_ashrrev_i32 {t3}, 31, {t3}\nv_cndmask_b32 v{CM+r}, {t2}, 0, vcc")
            a(f"v_cndmask_b32 v{CM+4+r}, {t2}, 0, s[70:71]")
            a(f"v_or_b32 v{CM+8+r}, {sT[4]}, v{CM+4+r}")
            if r % 2 == 0: a(f"v_and_b32 v{CM+12+r//2}, 0xffff, {t3}")
            else: a(f"v_and_b32 {t3}, 0xffff0000, {t3}\nv_or_b32 v{CM+12+r//2}, v{CM+12+r//2}, {t3}")

    def ws_touch(self, vo, ox, h):
        a = self.a
        if not (ox or h): return
        t = sT[12:16]
        fls = self.c.tfl
        a(f"s_lshl_b32 {t[0]}, {sC}, 2\ns_add_u32 {t[0]}, {t[0]}, {sW}\ns_lshr_b32 {t[1]}, {t[0]}, 3\ns_mul_i32 {t[1]}, {t[1]}, {HT}\ns_add_u32 {t[1]}, {t[1]}, {sRB0}\ns_and_b32 {t[2]}, {t[0]}, 7")
        if ox:
            a(f"s_lshl_b32 {t[3]}, {t[2]}, 11\ns_add_u32 {t[3]}, {t[3]}, {t[1]}\ns_add_u32 {t[3]}, {t[3]}, {O_H}\ns_mov_b64 exec, 0xffff")
            for fl in fls: a.vmem(f"buffer_load_dword {DUMMY}, {vo}, {WS}, {t[3]} offen {fl}", "t")
            a(f"s_mul_i32 {t[3]}, {t[0]}, {17*128}\ns_add_u32 {t[3]}, {t[3]}, {sRB0}\ns_mov_b64 exec, 0x1ffff")
            for fl in fls: a.vmem(f"buffer_load_dword {DUMMY}, {vo}, {WS}, {t[3]} offen {fl}", "t")
        if h:
            a(f"s_mul_i32 {t[3]}, {t[2]}, {27*128}\ns_add_u32 {t[3]}, {t[3]}, {t[1]}\ns_add_u32 {t[3]}, {t[3]}, {O_H + 16*KB}\ns_mov_b64 exec, 0x7ffffff")
            for fl in fls: a.vmem(f"buffer_load_dword {DUMMY}, {vo}, {WS}, {t[3]} offen {fl}", "t")
        a(f"s_mov_b64 exec, -1")

    def cs_addr(self, base, v0, pshift):
        a = self.a
        a(f"s_lshr_b32 {sT[4]}, {sW}, 1\ns_mul_i32 {sT[4]}, {sT[4]}, {6*KB}\ns_and_b32 {sT[5]}, {sW}, 1\ns_lshl_b32 {sT[6]}, {sT[5]}, 5\ns_lshl_b32 {sT[5]}, {sT[5]}, {pshift}")
        a(f"s_add_u32 {sT[4]}, {sT[4]}, {sT[5]}")
        a(f"v_xor_b32 v{base}, {sT[6]}, {v0}\nv_add_u32 v{base}, {sT[4]}, v{base}")
        a(f"v_xor_b32 v{base+1}, 32, v{base}\nv_add_u32 v{base+1}, {sT[5]}, v{base+1}\nv_add_u32 v{base+2}, {1 << pshift}, v{base}")

    def cs_publish_F(self, accs, t):
        a = self.a
        for i in range(3): self.F(f"v_accvgpr_read_b32 v{t+1+i}, a{accs + 4*i}")
        self.F(f"s_mul_i32 {sT[4]}, {sW}, 192\ns_add_u32 {sT[4]}, {sT[4]}, {L_CSP}\nv_add_u32 v{t}, {sT[4]}, {vPB}")
        self.F(lambda: a.lds(f"ds_write2_b32 v{t}, v{t+1}, v{t+2} offset0:0 offset1:16"))
        self.F(lambda: a.lds(f"ds_write_b32 v{t}, v{t+3} offset:128"))

    def cs_combine_F(self, dst, t):
        a = self.a
        self.F(f"v_lshlrev_b32 v{t}, 2, {vL}\nv_add_u32 v{t}, {L_CSP}, v{t}")
        self.F(lambda: a.lds(f"ds_read2_b32 {vr(t+2, 2)}, v{t} offset0:0 offset1:64", "cc"))
        self.F(lambda: a.lds(f"ds_read2_b32 {vr(t+4, 2)}, v{t} offset0:96 offset1:160", "cc"))
        self.F(f"v_add_u32 v{t}, {dst - L_CSP}, v{t}")
    def cs_combine2_F(self, t):
        a = self.a
        self.F(lambda: a.wait(lg="cc"))
        self.F(f"v_add_f32 v{t+2}, v{t+2}, v{t+4}\nv_add_f32 v{t+3}, v{t+3}, v{t+5}")
        self.F(lambda: a.lds(f"ds_write2_b32 v{t}, v{t+2}, v{t+3} offset0:0 offset1:64"))

    def wide(self, blk, areg, acc, wf, pre_k, swapV, post_frag=None, rate=lambda f: 2, a_lds=False, between=None):
        a = self.a
        LA = self.c.LA; WE = self.c.WE
        def rd(f, h):
            if self.c.x_nord and not swapV: return
            ks, j = divmod(f, 6)
            v, off = blk(ks, j // 2, h, j % 2)
            a.lds(f"ds_read_b64_tr_b16 {vr(wf + (f % 8)*4 + 2*h, 2)}, {v} offset:{off}", f"w{f}")
        for f in range(LA):
            for h in range(2): rd(f, h)
        if between: between()
        for ks in range(16):
            if self.c.kstamps and ks in self.c.kstamps: self.stamp(f"k{ks}")
            pre_k(ks)
            for j in range(6):
                f = ks*6 + j
                s = wf + (f % 8)*4
                if j == 0 and a_lds: a.wait(lg=f"x{ks}")
                if j == 0 and not a_lds:
                    while f"a{ks}" not in self.a_done: self.vq.pop(0)()
                if j % WE == 0: a.wait(vm=f"a{ks}" if j == 0 else None, lg=f"w{f+WE-1}")
                n = rate(f)
                for T in range(2):
                    d = acc + (j*2 + T)*4
                    c = "0" if ks == 0 else vr(d)
                    if swapV and j >= 4: a(f"{MF} {vr(d)}, {vr(areg(ks, T))}, {vr(s)}, {c}")
                    else: a(f"{MF} {vr(d)}, {vr(s)}, {vr(areg(ks, T))}, {c}")
                    if f + LA < 96: rd(f + LA, T)
                    else: self.fill(1)
                    self.slot((n + 1 - T) // 2)
                if post_frag: post_frag(ks, j)

    def a_loader(self, areg, sA0, sA1):
        a = self.a
        def items(ks):
            it = []
            if ks >= 16: return it
            if ks and ks % 4 == 0: it.append(lambda: a(f"s_add_u32 {sA0}, {sA0}, 4096")); it.append(lambda: a(f"s_add_u32 {sA1}, {sA1}, 4096"))
            for T in range(2):
                def f(T=T):
                    if not (self.c.x_nold and ks >= 2): a.vmem(f"buffer_load_dwordx4 {vr(areg(ks, T))}, {vL16}, {WS}, {(sA0, sA1)[T]} offen offset:{(ks%4)*KB} sc1", f"a{ks}")
                    if T: self.a_done.add(f"a{ks}")
                f.dma = True
                it.append(f)
            return it
        self.a_done = set()
        stream = []
        for ks in range(16): stream.append(items(ks))
        return stream

    def a_sched(self, stream, ks):
        PD0, PD = self.c.PD0, self.c.PD
        upto = lambda k: min(16, PD0 + k + min(PD - PD0, (k + 1)//2) + 1) if k >= 0 else PD0
        out = []
        for k in range(upto(ks - 1), upto(ks)): out += stream[k]
        return out

    P1_A0 = VB; P1_X32 = VB + 64; P1_ACC = VB + 96; P1_WF = VB + 144; P1_ST = VB + 176; P1_HA = VB + 182; P1_RT = VB + 186

    def p1_prep(self):
        a = self.a
        CS = self.P1_X32 + 16
        sA0, sA1, sH = sT[0], sT[1], sT[2]
        self.next_arena()
        a(f"s_lshl_b32 {sA0}, {sW}, 15\ns_add_u32 {sA0}, {sA0}, {sRD}\ns_add_u32 {sA1}, {sA0}, {16*KB}")
        a(f"s_lshl_b32 {sT[3]}, {sW}, 11\ns_add_u32 {sT[3]}, {sT[3]}, {sRD}\ns_add_u32 {sT[3]}, {sT[3]}, {O_ST}")
        a(f"v_add_u32 v240, {60*KB}, {vTH}")
        for i in range(16): a(f"v_accvgpr_read_b32 v{CS+i}, a{240+i}")
        a(f"s_lshl_b32 {sT[4]}, {sW}, 9\ns_add_u32 {sT[4]}, {sT[4]}, {L_STT}\nv_add_u32 v{vTMP+4}, {sT[4]}, {vPB}\nv_add_u32 v{vTMP+5}, {sT[4]}, {vG16}")
        a(f"s_cmp_lg_u32 {sHAS}, 0\ns_cselect_b32 {sT[5]}, 0, 0x40000000\ns_cselect_b32 {sH}, {512*KB}, 0\ns_sub_u32 {sH}, {sRB0}, {sH}")
        a(f"s_add_u32 {sT[6]}, {sH}, {O_FL + 256}\ns_add_u32 {sT[7]}, {sH}, {O_HALO + 16*KB}")
        a(f"s_lshl_b32 {sT[4]}, {sW}, 12\ns_add_u32 {sH}, {sH}, {sT[4]}\ns_add_u32 {sH}, {sH}, {O_HALO}")
        a(f"v_subrev_u32 {vR0}, {96*KB}, {vR0}\nv_subrev_u32 {vR1}, {96*KB}, {vR1}\nv_add_u32 {vZ0}, {48*KB}, {vR0}\nv_add_u32 {vZ1}, {48*KB}, {vR1}")

    def p1(self, ps):
        a = self.a
        def xblk(ks, p, h, t):
            ad = ((ks*2 + h)*3 + p)*KB
            return ((vT0, vT1)[t], ad) if ad < 64*KB else ((vT0h, vT1h)[t], ad - 64*KB)
        A0, X32, ACC, WF, ST, HA, RT = self.P1_A0, self.P1_X32, self.P1_ACC, self.P1_WF, self.P1_ST, self.P1_HA, self.P1_RT
        acc = lambda j, T: ACC + (j*2 + T)*4
        hw = lambda k: (X32 + k*4) if k < 8 else (A0 + (k-8)*4)
        sA0, sA1, sH = sT[0], sT[1], sT[2]
        def hw_read(k, h):
            off = (k*2 + h)*3*KB
            if off < 60*KB: a.lds(f"ds_read_b64_tr_b16 {vr(hw(k) + 2*h, 2)}, {vTH} offset:{off}", "hw")
            else: a.lds(f"ds_read_b64_tr_b16 {vr(hw(k) + 2*h, 2)}, v240 offset:{off - 60*KB}", "hw")
        MT = A0 + 48
        if ps == 0:
            AF = A0 + 32; CW = A0 + 48; CA = A0 + 60
            vX = ["v224", "v225", "v226", "v227"]
            vDQ, vXA0, vXA1, vXRa, vHr, vHd = "v228", "v229", "v230", "v231", "v241", "v232"
            CEN = 234
            t0, t1, t2, t3 = [f"v{vTMP+i}" for i in range(4)]
            a("s_cmp_ge_u32 s2, 256\ns_cbranch_scc1 L_end")
            for srd, off in ((8, 0), (12, 8), (16, 16), (20, 32), (24, 40), (28, 48), (32, 56), (36, 64), (40, 72)):
                a(f"s_load_dwordx2 s[{srd}:{srd+1}], s[0:1], {off}")
            a(f"v_lshrrev_b32 v1, 6, v0\nv_and_b32 v0, 63, v0\ns_and_b32 {sR}, s2, 15\nv_readfirstlane_b32 {sW}, v1")
            sizes = {8: 2048*1024, 12: 512*3072, 16: 513*1024, 20: 512*2752, 24: 2752, 28: 1377*1024, 32: 2048*1024, 36: 256, 40: WS_SIZE}
            for srd, n in sizes.items(): a(f"s_mov_b32 s{srd+2}, {n}\ns_mov_b32 s{srd+3}, 0x20000")
            if self.c.stamps or self.c.dbgstamps: a(f"v_mov_b32 {vSTAMP}, 0")
            a(f"s_lshr_b32 {sC}, s2, 4\ns_lshl_b32 {sRB0}, {sR}, 19\ns_add_u32 {sRB0}, {sRB0}, {self.c.ws_base}")
            a(f"s_and_b32 {sT[0]}, {sR}, 7\ns_lshl_b32 {sROW}, {sT[0]}, 8\ns_lshr_b32 {sT[1]}, {sR}, 3\ns_add_u32 {sROW}, {sROW}, {sT[1]}\ns_lshl_b32 {sROW}, {sROW}, 10")
            a(f"s_cmp_lg_u32 {sT[0]}, 0\ns_cselect_b32 {sHAS}, 1, 0")
            a(f"s_mul_i32 {sW3K}, {sW}, {3*KB}\ns_lshl_b32 {sPAGE}, {sW3K}, 2\ns_add_u32 {sPAGE}, {sPAGE}, {L_Z}")
            a(f"s_lshr_b32 {sT[2]}, {sW}, 1\ns_lshl_b32 {sT[2]}, {sT[2]}, 5\ns_and_b32 {sT[3]}, {sW}, 1\ns_lshl_b32 {sT[3]}, {sT[3]}, 2\ns_add_u32 {sT[2]}, {sT[2]}, {sT[3]}")
            a(f"s_mul_i32 {sQB}, {sT[2]}, 3072\ns_lshl_b32 {sT[3]}, {sC}, 6\ns_add_u32 {sQB}, {sQB}, {sT[3]}\ns_mul_i32 {s1B}, {sT[2]}, 2752")
            a(f"s_lshl_b32 {sA0}, {sW}, 16\ns_add_u32 {sA0}, {sA0}, {sROW}")
            a(f"v_lshrrev_b32 {t1}, 4, {vL}\nv_bfe_u32 {t2}, {vL}, 2, 2\nv_lshl_or_b32 {t2}, {t1}, 3, {t2}\nv_mul_u32_u24 {vDQ}, 3072, {t2}")
            a(f"v_and_b32 {t2}, 1, {t1}\nv_lshlrev_b32 {t2}, 1, {t2}\nv_and_b32 {t3}, 3, {vL}\nv_xor_b32 {t3}, {t2}, {t3}\nv_lshl_add_u32 {vDQ}, {t3}, 4, {vDQ}")
            a(f"v_lshrrev_b32 {t0}, 3, {vL}\nv_lshlrev_b32 {t2}, 11, {t0}\nv_and_b32 {t0}, 7, {vL}\nv_lshl_or_b32 v233, {t0}, 7, {t2}\nv_xor_b32 {t0}, {t0}, {t1}")
            a(f"v_lshl_or_b32 {vX[0]}, {t0}, 4, {t2}\nv_xor_b32 {vX[1]}, 64, {vX[0]}\nv_add_u32 {vX[1]}, {15*KB}, {vX[1]}")
            a(f"v_add_u32 {vX[2]}, {30*KB}, {vX[0]}\nv_add_u32 {vX[3]}, {30*KB}, {vX[1]}\nv_lshlrev_b32 v{vTMP+5}, 7, {vL}")
            a("s_waitcnt lgkmcnt(0)")
            if self.c.stamps: a(f"s_memrealtime {sSTMP}\ns_waitcnt lgkmcnt(0)\nv_writelane_b32 {vSTAMP}, s86, 62")
            self.stamp("start")
            def x_items(g):
                it = [self.m0(sPAGE, (g % 3)*4*KB), lambda: a(f"s_add_u32 {sA1}, {sA0}, {g*128}")]
                for i in range(4): it.append(self.ld(vX[i], X0, sA1, i*KB, f"c{g}", self.c.xfl if g == 0 else ""))
                return it
            grp = lambda g: x_items(g) + self.chunk_items("q", g, g*PAGE, vDQ)
            l1, l2, l3, l4 = [a.label("L_t") for _ in range(4)]
            gw = sT[10]
            def touch1(second):
                n = 6 if second else 5
                lo = (768 if second else 192)*KB
                a(f"s_mul_i32 {sT[4]}, {gw}, {6*128 if second else 576}\ns_add_u32 {sT[4]}, {sT[4]}, {lo}\ns_mov_b64 exec, {(1 << n) - 1:#x}")
                a.vmem(f"buffer_load_dword {DUMMY}, v{vTMP+5}, {WQKV}, {sT[4]} offen", "t")
                a(f"s_lshl_b32 {sT[4]}, {sC}, 2\ns_add_u32 {sT[4]}, {sT[4]}, {sW}\ns_lshl_b32 {sT[4]}, {sT[4]}, 12\ns_add_u32 {sT[4]}, {sT[4]}, {sROW}")
                a(f"s_mov_b64 exec, {0xf0f0 if second else 0x0e0e:#x}")
                a.vmem(f"buffer_load_dword {DUMMY}, v233, {X0}, {sT[4]} offen {self.c.xfl}", "t")
                a(f"s_mov_b64 exec, -1")
            a(f"s_lshl_b32 {gw}, s2, 2\ns_add_u32 {gw}, {gw}, {sW}")
            xw = sT[8]
            a(f"s_lshr_b32 {xw}, s2, 3\ns_lshl_b32 {xw}, {xw}, 2\ns_add_u32 {xw}, {xw}, {sW}")
            if self.c.touch: touch1(False)
            if self.c.col3:
                a(f"v_lshlrev_b32 v239, 10, {vL}\ns_mul_i32 {sT[4]}, {xw}, {12*KB}\ns_mov_b64 exec, 0xfff")
                a.vmem(f"buffer_load_dword {DUMMY}, v239, {WQKV}, {sT[4]} offen offset:384", "t")
                a(f"s_mov_b64 exec, -1")
            a(f"s_getpc_b64 s[70:71]\nL_pc:\ns_mul_i32 {sT[3]}, {xw}, {3*128}\nv_add_u32 {t3}, {sT[3]}, v{vTMP+5}")
            a(f"v_min_u32 {t3}, L_code_end-L_pc-4, {t3}\ns_mov_b64 exec, 7")
            a.vmem(f"global_load_dword {DUMMY}, {t3}, s[70:71]", "t")
            a(f"s_mov_b64 exec, -1\ns_or_b32 {sT[11]}, {sC}, {sW}\ns_cbranch_scc1 {l3}")
            a(f"v_mov_b32 {t0}, 0\nv_mov_b32 {t1}, 0\nv_lshlrev_b32 {t2}, 3, {vL}\ns_add_u32 {sT[3]}, {sRB0}, {O_FL}")
            a(f"buffer_store_dwordx2 {vr(vTMP, 2)}, {t2}, {WS}, {sT[3]} offen sc1")
            a(f"{l3}:")
            g0 = grp(0)
            self.run(g0[:4]); a.bg = self.paced(g0[4:]); a.bg_every = self.c.bg0
            self.prologue2()
            a.bg_flush()
            a(f"s_getreg_b32 {sT[4]}, hwreg(HW_REG_XCC_ID)\ns_and_b32 {sT[4]}, {sT[4]}, 15")
            a(f"s_mul_i32 {sT[5]}, {sT[4]}, {sT[4]}\ns_lshl_b32 {sT[5]}, {sT[5]}, 16\ns_lshl_b32 {sT[4]}, {sT[4]}, 8")
            a(f"s_add_u32 {sCEN}, {sT[4]}, {sT[5]}\ns_add_u32 {sCEN}, {sCEN}, 1")
            a(f"v_and_b32 {t0}, 15, {vL}\nv_lshrrev_b32 {t1}, 1, {t0}\nv_lshlrev_b32 {t1}, 4, {t1}\nv_xor_b32 {t1}, {t1}, {vG16}")
            a(f"v_lshl_or_b32 {vXA0}, {t0}, 7, {t1}\nv_xor_b32 {vXA1}, 64, {vXA0}")
            a(f"v_lshrrev_b32 {t2}, 5, {vL}\nv_lshrrev_b32 {t3}, 1, {t0}\nv_xor_b32 {t2}, {t2}, {t3}\nv_lshlrev_b32 {t2}, 4, {t2}")
            a(f"v_lshl_or_b32 {vXRa}, {t0}, 7, {t2}\nv_bfe_u32 {t2}, {vL}, 4, 1\nv_lshl_or_b32 {vXRa}, {t2}, 3, {vXRa}")
            a(f"s_lshr_b32 {sT[4]}, {sMT}, 1\ns_mul_i32 {sT[4]}, {sT[4]}, {PAGE}")
            a(f"s_and_b32 {sT[5]}, {sW}, 1\ns_lshl_b32 {sT[5]}, {sT[5]}, 11\ns_add_u32 {sT[4]}, {sT[4]}, {sT[5]}\ns_add_u32 {sT[4]}, {sT[4]}, {L_Z}")
            a(f"v_add_u32 {vXRa}, {sT[4]}, {vXRa}")
            a(f"v_or_b32 {t0}, 8, {t0}\nv_lshrrev_b32 {t1}, 1, {t0}\nv_lshlrev_b32 {t1}, 4, {t1}\nv_xor_b32 {t1}, {t1}, {vG16}\nv_and_b32 {t0}, 7, {t0}")
            a(f"v_lshl_or_b32 {vHr}, {t0}, 7, {t1}\nv_add_u32 {vHr}, {L_E}, {vHr}")
            a(f"v_add_u32 {vXA0}, {sPAGE}, {vXA0}\nv_add_u32 {vXA1}, {sPAGE}, {vXA1}\nv_add_u32 v240, {60*KB}, {vTH}")
            self.cs_addr(CA, vT0, 10)
            a(f"s_cmp_lg_u32 {sHAS}, 0\ns_cselect_b32 {sT[3]}, 0, 0x40000000\ns_cselect_b32 {sH}, {32*KB}, 0\ns_sub_u32 {sH}, {sROW}, {sH}")
            a(f"v_add_u32 {vHd}, {sT[3]}, {vX[1]}\ns_lshl_b32 {sT[3]}, {sW}, 8\ns_add_u32 {sH}, {sH}, {sT[3]}\ns_lshl_b32 {sT[3]}, {sW}, 11")
            self.stamp("i.pro")
            self.run(grp(1))
            self.stamp("p1.issued")
            SA = 208
            areg = lambda ks, T: AF + ((ks % 2)*2 + T)*4
            def a_items(ks):
                return [lambda T=T: a.lds(f"ds_read_b128 {vr(areg(ks, T))}, {(vXA0, vXA1)[ks % 2]} offset:{((ks // 2) % 3)*4*KB + T*2*KB}", f"x{ks}") for T in range(2)]
            def cw_F(c):
                if c == 4: self.F("\n".join(f"v_add_u32 v{CA+i}, {48*KB}, v{CA+i}" for i in range(3)))
                for i in range(3):
                    for h in range(2):
                        self.F(lambda i=i, h=h: a.lds(f"ds_read_b64_tr_b16 {vr(CW + i*4 + 2*h, 2)}, v{CA+i} offset:{(c*PAGE) % (48*KB) + h*3*KB}", "cw"))
            def xr(c):
                l = a.label("L_xr")
                a(f"s_cmp_lg_u32 {sNB}, {c}\ns_cbranch_scc1 {l}")
                for t in range(4): a(f"v_xor_b32 v{vTMP+4}, {t*32}, {vXRa}\nds_read_b64 {vr(XR + 2*t, 2)}, v{vTMP+4} offset:{(c % 3)*4*KB}")
                a(f"s_waitcnt lgkmcnt(0)\n{l}:")
            def st_mfma(ks, T):
                A_ = vr(areg(ks, T))
                a(f"{MF} {ar(SA + T*4)}, {vr(ONES)}, {A_}, {'0' if ks == 0 else ar(SA + T*4)}")
                self.slot(2)
                a(f"{MF} {ar(SA + 8 + T*4)}, {A_}, {A_}, {'0' if ks == 0 else ar(SA + 8 + T*4)}")
                self.slot(2)
            a.wait(vm="c0")
            a("s_barrier")
            self.stamp("p1.g0")
            self.run(a_items(0))
            xr(0)
            HS = A0
            def pre_k(ks):
                if ks % 2 == 1 and ks < 15:
                    c = (ks + 1)//2
                    self.flush()
                    while c >= 2 and a.issued.get(f"c{c}", 0) < 7: self.vq.pop(0)()
                    self.stamp(f"b{ks}a")
                    a.wait(vm=f"c{c}")
                    self.stamp(f"b{ks}b")
                    a("s_barrier")
                    self.stamp(f"b{ks}c")
                    xr(c)
                if ks + 1 < 16: self.fq[0:0] = a_items(ks + 1)
                for h in range(2): self.F(lambda h=h: hw_read(ks, h))
                if ks == 0:
                    cw_F(0)
                    self.V(grp(2))
                    if self.c.touch: self.V(lambda: touch1(True))
                    for i in range(2): self.V([self.m0(sT[3], L_E + i*KB - KB - i*128), self.ld(vHd, X0, sH, KB + i*128, "halo")])
                if ks % 2 == 1 and ks < 15:
                    cw_F(c)
                    if c + 2 < 8: self.V(grp(c + 2))
                if ks == self.c.cen_ks:
                    def cen():
                        a(f"s_cmp_eq_u32 {sT[11]}, 0\ns_cselect_b32 {sT[4]}, 1, 0\nv_mov_b32 v{CEN}, {sCEN}\nv_mov_b32 v{CEN+1}, {sT[4]}")
                        a(f"s_lshl_b32 {sT[4]}, {sW}, 12\nv_mov_b32 v{CEN+2}, {sT[4]}\ns_lshl_b32 {sT[9]}, {sR}, 4\ns_mov_b64 exec, 1")
                        a.vmem(f"buffer_atomic_add_x2 {vr(CEN, 2)}, v{CEN+2}, {DBG}, {sT[9]} offen sc1", "t")
                        a(f"s_mov_b64 exec, -1")
                    self.V(cen)
                if ks == self.c.touch2_ks:
                    def t2f():
                        a(f"s_lshl_b32 {sT[4]}, {gw}, 9\ns_mov_b64 exec, 15")
                        a.vmem(f"buffer_load_dword {DUMMY}, v{vTMP+5}, {WO}, {sT[4]} offen offset:1024", "t")
                        if self.c.col3:
                            a(f"s_lshl_b32 {sT[4]}, {xw}, 12")
                            a.vmem(f"buffer_load_dword {DUMMY}, v239, {WO}, {sT[4]} offen offset:{1024+384}", "t")
                        a(f"s_mul_i32 {sT[4]}, {gw}, {1376}\ns_mov_b64 exec, 0x7ff")
                        a.vmem(f"buffer_load_dword {DUMMY}, v{vTMP+5}, {W1}, {sT[4]} offen", "t")
                        a.vmem(f"buffer_load_dword {DUMMY}, v{vTMP+5}, {W2}, {sT[4]} offen offset:1024", "t")
                        if self.c.col3:
                            a(f"s_mul_i32 {sT[4]}, {xw}, {11*KB}")
                            a.vmem(f"buffer_load_dword {DUMMY}, v239, {W2}, {sT[4]} offen offset:{1024+384}", "t")
                        a(f"s_mov_b64 exec, -1")
                    self.V(t2f)
                if ks == 14 and (self.c.w2x or self.c.w1x):
                    def t4f():
                        for srd, n, bias in ((W1, self.c.w1x, 0), (W2, self.c.w2x, 1024)):
                            if not n: continue
                            a(f"s_mul_i32 {sT[5]}, {xw}, {n*128}")
                            left = n
                            while left > 0:
                                k = min(left, 64)
                                m = (1 << k) - 1
                                a(f"s_mov_b32 exec_lo, {m & 0xffffffff:#x}\ns_mov_b32 exec_hi, {m >> 32:#x}")
                                a.vmem(f"buffer_load_dword {DUMMY}, v{vTMP+5}, {srd}, {sT[5]} offen offset:{bias}", "t")
                                left -= 64
                                if left > 0: a(f"s_add_u32 {sT[5]}, {sT[5]}, 8192")
                        a(f"s_mov_b64 exec, -1")
                    self.V(t4f)
                if ks == self.c.tws_ks:
                    self.V(lambda: self.ws_touch(f"v{vTMP+5}", self.c.touch_ox, self.c.touch_h and self.c.th_ks is None))
                if ks == 5:
                    self.F(lambda: a.wait(vm="halo"))
                    self.F(f"v_add_u32 v{vTMP}, {sT[3]}, {vHr}\nv_xor_b32 v{vTMP+1}, 64, v{vTMP}")
                    for k in range(4): self.F(lambda k=k: a.lds(f"ds_read_b128 {vr(HS + k*4)}, v{vTMP + k % 2} offset:{(k // 2)*KB}", "hx"))
                if ks == 7:
                    self.F(self.diag_text(ST + 4, HS + 16, HS + 20))
                    self.F(f"s_lshl_b32 {sT[4]}, {sW}, 7\ns_add_u32 {sT[4]}, {sT[4]}, {L_HST}\nv_lshlrev_b32 v{vTMP}, 1, {vPB}\nv_add_u32 v{vTMP}, {sT[4]}, v{vTMP}")
                    def hw_():
                        a(f"s_mov_b64 exec, {mDG}"); a.lds(f"ds_write_b64 v{vTMP}, {vr(ST + 4, 2)}"); a("s_mov_b64 exec, -1")
                    self.F(hw_)
                if ks == 10:
                    self.F(f"v_lshlrev_b32 v{vTMP}, 3, {vL}\nv_add_u32 v{vTMP}, {L_HST}, v{vTMP}")
                    self.F(lambda: a.lds(f"ds_read_b64 {vr(ST + 4, 2)}, v{vTMP}", "hs"))
                if ks == 12:
                    self.F(lambda: a.wait(lg="hs"))
                    self.F(self.stats_text(ST + 4, vTMP))
                if ks == 11: self.V(self.unit_items(0, 2))
                if ks == 13:
                    self.V(self.unit_items(1, 0))
                if ks == 15:
                    self.flush()
                    self.cs_publish_F(SA + 16, vTMP)
                    G = CW
                    for T in range(2):
                        self.F(f"v_accvgpr_read_b32 v{G + T*5}, a{SA + T*4}")
                        for i in range(4): self.F(f"v_accvgpr_read_b32 v{G + T*5 + 1 + i}, a{SA + 8 + T*4 + i}")
                    self.F2(self.diag_text(ST, G, G + 1), self.diag_text(ST + 2, G + 5, G + 6))
                    self.F2(self.stats_text(ST, G), self.stats_text(ST + 2, G + 1))
            def post_frag(ks, j):
                if ks == 0 and j in (0, 1): st_mfma(0, j)
                if j in (4, 5) and ks + 1 < 16 and not self.c.nostat:
                    if j == 4: a.wait(lg=f"x{ks+1}")
                    st_mfma(ks + 1, j - 4)
                if ks % 2 == 0 and j == (5 if ks == 0 else 2):
                    if ks == 0: self.flush()
                    assert not any(False for _ in self.fq)
                    a.wait(lg="cw")
                    for i in range(3):
                        a(f"{MF} {ar(SA + 16 + i*4)}, {vr(ONES)}, {vr(CW + i*4)}, {'0' if ks == 0 else ar(SA + 16 + i*4)}")
                        self.slot(2)
                if ks % 2 == 1 and j == 5: self.flush()
                if ks == 6 and j in (0, 1):
                    a.wait(lg="hx")
                    for k in (2*j, 2*j + 1):
                        a(f"{MF} {vr(HS+16)}, {vr(ONES)}, {vr(HS + k*4)}, {'0' if k == 0 else vr(HS+16)}"); self.slot(2)
                        a(f"{MF} {vr(HS+20)}, {vr(HS + k*4)}, {vr(HS + k*4)}, {'0' if k == 0 else vr(HS+20)}"); self.slot(2)
            self.vgap = self.c.vgap11
            self.wide(xblk, areg, ACC, WF, pre_k, True, post_frag, rate=lambda f: 2 if f >= 90 else self.c.r11, a_lds=True)
            self.vflush(); self.flush()
            self.stamp("p1.main")
            a(f"s_mov_b32 {sWR}, {sRB0}")
            a(f"s_lshl_b32 {sT[4]}, {sW}, 9\ns_add_u32 {sT[4]}, {sT[4]}, {L_STT}\nv_add_u32 v{vTMP+4}, {sT[4]}, {vPB}\nv_add_u32 v{vTMP+5}, {sT[4]}, {vG16}")
            for T in range(3): a.lds(f"ds_write2_b32 v{vTMP+4}, v{ST+2*T}, v{ST+2*T+1} offset0:{T*32} offset1:{T*32+16}")
            a(f"v_add_u32 v{vTMP}, {L_CSP}, {vG16}\nv_add_u32 v{vTMP+1}, {L_CSP}, {vPB}\nv_xor_b32 v240, 64, {vHr}")
            a.wait(lg="all")
            a("s_barrier")
            CS = AF; CS2 = WF + 16
            for j in range(4):
                a.lds(f"ds_read_b128 {vr(CS + j*4)}, v{vTMP} offset:{j*64}", "cs")
                a.lds(f"ds_read_b128 {vr(CS2 + j*4)}, v{vTMP} offset:{384 + j*64}", "cs")
            a.lds(f"ds_read2_b32 {vr(vCSV, 2)}, v{vTMP+1} offset0:64 offset1:80", "cs")
            a.lds(f"ds_read2_b32 {vr(vTMP+2, 2)}, v{vTMP+1} offset0:160 offset1:176", "cs")
            for T in range(3):
                a.lds(f"ds_read_b128 {vr(RT + 4*T)}, v{vTMP+5} offset:{T*128}", "tsr")
                a.lds(f"ds_read_b128 {vr(MT + 4*T)}, v{vTMP+5} offset:{T*128+64}", "tsr")
            hxa = lambda k: ("v241" if k % 2 == 0 else "v240", (k // 2)*KB)
            self.F(lambda: a.wait(lg="tsr"))
            for i in range(16): self.F(f"v_add_f32 v{CS+i}, v{CS+i}, v{CS2+i}")
            for i in range(2): self.F(f"v_add_f32 v{vCSV+i}, v{vCSV+i}, v{vTMP+2+i}")
            for j in (2, 3, 4, 5, 0, 1):
                for T in (1, 0):
                    for r in range(4):
                        if j < 4: self.F(f"v_fmac_f32 v{acc(j, T) + r}, v{CS + j*4 + r}, v{ST + 2*T + 1}")
                        else: self.F(f"v_fmac_f32 v{acc(j, T) + r}, v{MT + 4*T + r}, v{vCSV + j - 4}")
            for i in range(16): self.F(f"v_accvgpr_write_b32 a{240+i}, v{CS+i}")
        else:
            STL = X32; CS = X32 + 16
            areg = lambda ks, T: A0 + ((ks % 8)*2 + T)*4
            lda = self.a_loader(areg, sA0, sA1)
            def between():
                self.poll(vPB, sPLB, 4)
                self.stamp("p1.polled")
                for ks in range(self.c.PD0): self.run(lda[ks])
                a(f"s_cmp_eq_u32 {sMT}, 7\ns_cselect_b32 {sT[4]}, 0, 0x40000000")
                a(f"v_mov_b32 v{vTMP}, 1\nv_mov_b32 v{vTMP+1}, {sT[4]}\ns_mov_b64 exec, 1")
                a.vmem(f"buffer_store_dword v{vTMP}, v{vTMP+1}, {WS}, {sH3} offen sc1", "t")
                a(f"s_mov_b64 exec, -1")
            M2 = STL + 8
            def pre_k(ks):
                if ks == 8: self.flush()
                self.V(self.a_sched(lda, ks))
                if ks == 1:
                    for T in range(2):
                        self.V(lambda T=T: a.vmem(f"buffer_load_dwordx4 {vr(STL + T*4)}, {vL16}, {WS}, {sT[3]} offen offset:{T*KB} sc1", "stl5"))
                if ks == 4:
                    assert a.issued["stl5"] == 2
                    self.F(lambda: a.wait(vm="stl5"))
                    for T in range(2):
                        self.F(f"v_add_f32 v{ST+2*T}, v{STL+4*T}, v{STL+4*T+2}\nv_add_f32 v{ST+2*T+1}, v{STL+4*T+1}, v{STL+4*T+3}")
                    self.F2(self.stats_text(ST, vTMP), self.stats_text(ST + 2, vTMP + 1))
                    for T in range(2):
                        self.F(lambda T=T: a.lds(f"ds_write2_b32 v{vTMP+4}, v{ST+2*T}, v{ST+2*T+1} offset0:{T*32} offset1:{T*32+16}"))
                    for T in range(2):
                        self.F(lambda T=T: a.lds(f"ds_read_b128 {vr(RT + 4*T)}, v{vTMP+5} offset:{T*128}", "tsr"))
                        self.F(lambda T=T: a.lds(f"ds_read_b128 {vr(M2 + 4*T)}, v{vTMP+5} offset:{T*128+64}", "tsr"))
                if ks == 9:
                    a(f"v_and_b32 v{vTMP+3}, 28, {vPB}")
                    self.V(lambda: a.vmem(f"buffer_load_dword v{vTMP+2}, v{vTMP+3}, {WS}, {sT[6]} offen sc1", "hf"))
                if ks == 12:
                    self.vflush()
                    l = a.label("L_nh")
                    a.wait(vm="hf")
                    a(f"v_cmp_gt_u32 vcc, {sHAS}, v{vTMP+2}")
                    a(f"s_cbranch_vccz {l}")
                    keep = list(a.vm)
                    self.poll(f"v{vTMP+3}", sT[6], 1)
                    a.vm = keep
                    a(f"{l}:")
                    a(f"v_add_u32 v241, {sT[5]}, {vL16}\ns_mov_b32 m0, {sPAGE}")
                    self.V(lambda: a.vmem(f"buffer_load_dwordx4 {vr(HA)}, v241, {WS}, {sT[7]} offen sc1", "hst"))
                    for i in range(4): self.V(self.ld("v241", WS, sH, i*KB, "halo", "sc1"))
                    for k in range(16):
                        for h in range(2): self.F(lambda k=k, h=h: hw_read(k, h))
            def post_frag(ks, j):
                if ks in (8, 9, 10, 11):
                    jj = (j + 3) % 6
                    r = ks - 8
                    if ks == 8 and j == 0: a.wait(lg="tsr")
                    for T in range(2):
                        if jj < 4: a(f"v_fmac_f32 v{acc(jj, T) + r}, v{CS + jj*4 + r}, v{ST + 2*T + 1}")
                        else: a(f"v_fmac_f32 v{acc(jj, T) + r}, v{M2 + 4*T + r}, v{vCSV + jj - 4}")
            self.vgap = self.c.vgap
            self.wide(xblk, areg, ACC, WF, pre_k, True, post_frag, rate=lambda f: 0 if 48 <= f < 72 else 2, between=between)
            self.vflush(); self.flush()
            self.stamp("p1.main")
            a.wait(vm="halo", lg="all")
            a(f"v_add_f32 v{ST+4}, v{HA}, v{HA+2}\nv_add_f32 v{ST+5}, v{HA+1}, v{HA+3}")
            a(f"v_add_u32 v240, {L_Z}, {vL16}")
            a("s_barrier")
            hxa = lambda k: ("v240", (k // 4)*PAGE + (k % 4)*KB)
        self.stamp("p1.A")
        HX = WF
        def hx_read(k):
            v, off = hxa(k)
            a.lds(f"ds_read_b128 {vr(HX + (k % 4)*4)}, {v} offset:{off}", f"hx{k}")
        for k in range(3): hx_read(k)
        KP = WF + 16
        def scale_pack(j, T, dst):
            b = acc(j, T)
            for r in range(4): self.F(f"v_mul_f32 v{b+r}, v{b+r}, v{(ST + 2*T) if j < 4 else (RT + 4*T + r)}")
            self.F(f"v_cvt_pk_bf16_f32 v{dst}, v{b}, v{b+1}\nv_cvt_pk_bf16_f32 v{dst+1}, v{b+2}, v{b+3}")
        VPb = [acc(0, 0) + 2, acc(1, 0) + 2]
        QPb = lambda h, T: (WF + 28 + T*2) if h == 0 else (A0 + 60 + T*2)
        if ps == 1:
            self.F(self.stats_text(ST + 4, vTMP))
            self.F(lambda: a.lds(f"ds_write2_b32 v{vTMP+4}, v{ST+4}, v{ST+5} offset0:64 offset1:80"))
            self.F(lambda: a.lds(f"ds_read_b128 {vr(RT + 8)}, v{vTMP+5} offset:256", "tsr"))
            self.F(lambda: a.lds(f"ds_read_b128 {vr(MT + 8)}, v{vTMP+5} offset:320", "tsr"))
        for h in range(2):
            for T in range(2):
                b = acc(h, T)
                self.F(f"v_cvt_pk_bf16_f32 v{QPb(h, T)}, v{b}, v{b+1}\nv_cvt_pk_bf16_f32 v{QPb(h, T)+1}, v{b+2}, v{b+3}")
        for T in (1, 0):
            for h in range(2): scale_pack(2 + h, T, KP + h*6 + 2 + 2*T)
            for h in range(2): scale_pack(4 + h, T, VPb[h] + 2 + 2*T)
        if ps == 0:
            self.fq += self.unit_reads(0, 2) + self.unit_reads(1, 0)
        lv, le = a.label("L_hv"), a.label("L_he")
        a(f"s_cmp_ge_u32 {sW}, 2\ns_cbranch_scc1 {lv}")
        if ps == 1:
            for c in range(self.c.w1_at_A): a.bg += self.paced(self.chunk_items("1", c, c*PAGE))
        save = (list(a.vm), list(a.lg), list(self.fq), list(a.bg))
        per = 3
        HC = A0 + 32 if ps == 1 else HX
        for var in range(2):
            a.vm, a.lg, self.fq, a.bg = list(save[0]), list(save[1]), list(save[2]), list(save[3])
            a.bg_every = self.c.bg1; a._bgc = 0
            for k in range(16):
                a.wait(lg=f"hx{k}")
                W_, A_ = vr(hw(k)), vr(HX + (k % 4)*4)
                c = "0" if k == 0 else vr(HA)
                a(f"{MF} {vr(HA)}, {W_}, {A_}, {c}" if var == 0 else f"{MF} {vr(HA)}, {A_}, {W_}, {c}")
                if k + 3 < 16: hx_read(k + 3)
                self.fill(per)
            if var == 0: a(f"s_branch {le}\n{lv}:\ns_nop 1")
            else: a(f"{le}:")
        self.flush()
        a.bg_every = 0
        a.wait(lg="tsr")
        lv, le = a.label("L_hv"), a.label("L_he")
        a(f"s_bitcmp0_b32 {sW}, 0\ns_cselect_b64 vcc, -1, 0\ns_cmp_ge_u32 {sW}, 2\ns_cbranch_scc1 {lv}")
        for r in range(4): a(f"v_accvgpr_read_b32 v{HX+r}, a{248+r}\nv_accvgpr_read_b32 v{HX+4+r}, a{252+r}")
        for r in range(4): a(f"v_cndmask_b32 v{HX+r}, v{HX+4+r}, v{HX+r}, vcc")
        for r in range(4): a(f"v_fmac_f32 v{HA+r}, v{HX+r}, v{ST+5}")
        for r in range(4): a(f"v_mul_f32 v{HA+r}, v{HA+r}, v{ST+4}")
        a(f"s_branch {le}\n{lv}:")
        a(f"v_cndmask_b32 v{HX}, v{vCSV+1}, v{vCSV}, vcc")
        for r in range(4): a(f"v_fmac_f32 v{HA+r}, v{MT+8+r}, v{HX}")
        for r in range(4): a(f"v_mul_f32 v{HA+r}, v{HA+r}, v{RT+8+r}")
        a(f"{le}:")
        HP = vTMP + 2
        a(f"v_cvt_pk_bf16_f32 v{HP}, v{HA}, v{HA+1}\nv_cvt_pk_bf16_f32 v{HP+1}, v{HA+2}, v{HA+3}")
        KVP = 4*KB
        a(f"s_lshl_b32 {sT[4]}, {sW}, 9\ns_add_u32 {sT[4]}, {sT[4]}, {L_Z + KVP}\nv_lshl_add_u32 v{vTMP+1}, {vL}, 3, {sT[4]}")
        a(f"ds_write_b64 v{vTMP+1}, {vr(HP, 2)}")
        a(f"s_add_u32 {sT[4]}, {sPAGE}, {KVP}\nv_lshl_add_u32 v{vTMP}, {vL}, 3, {sT[4]}")
        l = a.label("L_nx")
        a(f"s_cmp_eq_u32 {sW}, 3\ns_cbranch_scc1 {l}")
        for h in range(2):
            a(f"ds_write_b64 v{vTMP}, {vr(KP + h*6 + 4, 2)} offset:{PAGE + h*512}")
            a(f"ds_write_b64 v{vTMP}, {vr(VPb[h] + 4, 2)} offset:{PAGE + 1024 + h*512}")
        a(f"{l}:")
        units = [(h, T) for T in (1, 0) for h in range(2)]
        SC = A0
        def sc_cur(u):
            h, T = units[u]; a(f"{MF16} {vr(SC + u*8)}, {vr(KP + h*6 + 2 + T*2, 2)}, {vr(QPb(h, T), 2)}, {vr(CM)}")
        def sc_prev(u):
            h, T = units[u]; a(f"{MF16} {vr(SC + u*8 + 4)}, {vr(KP + h*6 + T*2, 2)}, {vr(QPb(h, T), 2)}, {vr(CM + (8 if T == 0 else 4))}")
        for u in range(2): sc_cur(u); sc_prev(u)
        for u in (2, 3): sc_cur(u)
        cexp = 0.25 * LOG2E
        CQ = X32
        for T in range(2): a(f"v_mul_f32 v{CQ+T}, {f32(cexp)}, v{ST+2*T}")
        self.stamp("p1.preB")
        a("s_waitcnt lgkmcnt(0)\ns_barrier"); a.lg = []
        for h in range(2): a.lds(f"ds_read_b64 {vr(KP + h*6, 2)}, v{vTMP} offset:{h*512}", "kp")
        for h in range(2): a.lds(f"ds_read_b64 {vr(VPb[h], 2)}, v{vTMP} offset:{1024 + h*512}", "vp")
        CEN = RT
        if ps == 0:
            a(f"s_sub_u32 {sT[8]}, {sR}, {sHAS}\ns_lshl_b32 {sT[8]}, {sT[8]}, 4\nv_mov_b32 v{vTMP+4}, 0")
            a.vmem(f"buffer_load_dwordx2 {vr(CEN, 2)}, v{vTMP+4}, {DBG}, {sT[9]} offen sc1", "cen")
            a.vmem(f"buffer_load_dwordx2 {vr(CEN+2, 2)}, v{vTMP+4}, {DBG}, {sT[8]} offen sc1", "cen")
            a.bg += self.paced(self.unit_items(2, 2) + self.unit_items(3, 0))
        a.bg_every = self.c.bg1 if ps else self.c.bg1u
        MX = X32 + 4
        def mx(u):
            for r in range(4): a(f"v_max_f32 v{SC+u*8+r}, v{SC+u*8+r}, v{SC+u*8+4+r}")
            a(f"v_max3_f32 v{MX+u}, v{SC+u*8}, v{SC+u*8+1}, v{SC+u*8+2}")
            a(f"v_max_f32 v{MX+u}, v{MX+u}, v{SC+u*8+3}")
        mx(0)
        a.wait(lg="kp")
        for u in (2, 3): sc_prev(u)
        mx(1)
        a(f"s_mul_i32 {sT[3]}, {sW}, {2*HT}\ns_lshl_b32 {sT[4]}, {sC}, 10")
        a(f"v_permlane16_swap_b32 v{MX}, v{MX+1}")
        a.wait(lg="vp")
        if ps == 0: a.bg += self.paced(self.unit_items(4, 1))
        mx(2); mx(3)
        a(f"v_max_f32 v{MX}, v{MX}, v{MX+1}\ns_add_u32 {sT[3]}, {sT[3]}, {sT[4]}")
        a(f"v_permlane16_swap_b32 v{MX+2}, v{MX+3}")
        a(f"v_max_f32 v{MX+2}, v{MX+2}, v{MX+3}\ns_add_u32 {sT[3]}, {sT[3]}, {sWR}\ns_add_u32 {sT[3]}, {sT[3]}, {O_H}")
        a(f"v_permlane32_swap_b32 v{MX}, v{MX+2}")
        a(f"v_max_f32 v{MX}, v{MX}, v{MX+2}")
        a(f"v_mov_b32 v{MX+2}, v{MX}\ns_add_u32 {sT[4]}, {sT[3]}, {HT}")
        a(f"v_permlane32_swap_b32 v{MX}, v{MX+2}")
        a(f"v_mov_b32 v{MX+1}, v{MX}\nv_mov_b32 v{MX+3}, v{MX+2}")
        a(f"v_permlane16_swap_b32 v{MX}, v{MX+1}\nv_permlane16_swap_b32 v{MX+2}, v{MX+3}")
        for u in range(4): a(f"v_mul_f32 v{MX+u}, v{MX+u}, v{CQ + units[u][1]}")
        OA = ACC + 16
        for u, (h, T) in enumerate(units):
            b = SC + u*8
            for r in range(4): a(f"v_fma_f32 v{b+r}, v{b+r}, v{CQ+T}, -v{MX+u}")
        def pv_valu(u):
            b = SC + u*8
            a(f"v_cvt_pk_bf16_f32 v{b}, v{b}, v{b+1}\nv_cvt_pk_bf16_f32 v{b+1}, v{b+2}, v{b+3}")
            for p in range(2): a(f"v_and_b32 v{b+4+p}, v{CM+12+p}, v{b+p}\nv_bfi_b32 v{b+6+p}, v{CM+12+p}, 0, v{b+p}")
        def pv_mfma(u):
            h, T = units[u]; b = SC + u*8; o = OA + u*8
            a(f"{MF} {vr(o + 4)}, {vr(ONES)}, {vr(b + 4)}, 0")
            a(f"{MF} {vr(o)}, {vr(VPb[h] + T*2)}, {vr(b + 4)}, 0")
        ex = lambda u: a("\n".join(f"v_exp_f32 v{SC+u*8+r}, v{SC+u*8+r}" for r in range(4)))
        ex(0); ex(1); pv_valu(0); ex(2); pv_mfma(0); pv_valu(1); ex(3); pv_mfma(1); pv_valu(2); pv_valu(3); pv_mfma(2); pv_mfma(3)
        OF = X32 + 8
        for u, (h, T) in enumerate(units):
            b = OA + u*8
            a(f"v_rcp_f32 v{b+4}, v{b+4}")
            if u:
                pb = OA + (u-1)*8
                for r in range(4): a(f"v_mul_f32 v{pb+r}, v{pb+r}, v{pb+4}")
                ph_, pT = units[u-1]
                for p in range(2): a(f"v_cvt_pk_bf16_f32 v{OF + pT*4 + ph_*2 + p}, v{pb+2*p}, v{pb+2*p+1}")
        b = OA + 24; h, T = units[3]
        for r in range(4): a(f"v_mul_f32 v{b+r}, v{b+r}, v{b+4}")
        for p in range(2): a(f"v_cvt_pk_bf16_f32 v{OF + T*4 + h*2 + p}, v{b+2*p}, v{b+2*p+1}")
        a.bg_every = 0
        if ps == 0 and 1 not in self.c.wt: self.census(CEN)
        self.store2([f"buffer_store_dwordx4 {vr(OF + 4*T)}, {vL16}, {WS}, {sT[3+T]} offen" for T in (1, 0)], wt=ps*4 + 1)
        self.stamp("p1.stored")
        a.bg_flush()
        if ps == 1:
            for c in range(self.c.w1_at_A, self.c.w1_at_A + self.c.w1_drain1): self.run(self.chunk_items("1", c, c*PAGE))
        if ps == 0 and 1 in self.c.wt: self.census(CEN)
        if ps == 0:
            todo = list(range(5, 5 + self.c.hop1_units))
            self.run(self.unit_reads(2, 2) + self.unit_reads(3, 0))
            self.narrow_prep(ps, 2)
            a.wait(lg="all")
            for u in todo[:2]: self.run(self.unit_items(u, u % 3))
            self.run(self.unit_reads(4, 1))
            a.wait(lg="all")
            for u in todo[2:]: self.run(self.unit_items(u, u % 3))
        else: self.narrow_prep(ps, 2)
        self.flag(sFLA, ps*4 + 1)
        self.stamp("p1.flag")

    def census(self, r):
        a = self.a
        lp, lc, ld = a.label("L_cen"), a.label("L_cenc"), a.label("L_cend")
        keep_after = None
        a(f"s_mov_b32 {sSPIN}, 0")
        a.wait(vm="cen")
        a(f"{lc}:")
        a(f"v_readfirstlane_b32 {sT[5]}, v{r}\nv_readfirstlane_b32 {sT[6]}, v{r+1}\nv_readfirstlane_b32 {sT[7]}, v{r+3}")
        a(f"s_and_b32 {sT[6]}, {sT[6]}, {sT[7]}\ns_lshl_b32 {sT[6]}, {sT[6]}, 4\ns_and_b32 {sT[6]}, {sT[6]}, {sT[5]}")
        a(f"s_cbranch_scc1 {ld}")
        a(f"v_mov_b32 v{vTMP+4}, 0")
        a(f"buffer_load_dwordx2 {vr(r, 2)}, v{vTMP+4}, {DBG}, {sT[9]} offen sc1")
        a(f"buffer_load_dwordx2 {vr(r+2, 2)}, v{vTMP+4}, {DBG}, {sT[8]} offen sc1")
        a("s_waitcnt vmcnt(0)")
        a(f"s_add_u32 {sSPIN}, {sSPIN}, 1\ns_cmp_lt_u32 {sSPIN}, {self.c.spin_max}\ns_cbranch_scc1 {lc}")
        a(f"{ld}:")
        a(f"s_lshl_b32 {sT[6]}, {sCEN}, 4\ns_cmp_lg_u32 {sT[5]}, {sT[6]}\ns_cselect_b32 {sSLOW}, 1, {1 if self.c.force_slow else 0}")
        a(f"s_lshl_b32 {sSTEP}, {sSLOW}, 23")

    N_A0 = VB; N_AC = VB + 64; N_OWN = VB + 96; N_PS = VB + 112; N_LOC = VB + 176

    def narrow_prep(self, ps, which):
        a = self.a
        nks = 4 if which == 2 else 11
        ph = ps*4 + which
        OWN, LOC = self.N_OWN, self.N_LOC
        if ph > 2:
            for p in range(2): a(f"v_permlane16_swap_b32 v{XR+4*p}, v{XR+4*p+2}\nv_permlane16_swap_b32 v{XR+4*p+1}, v{XR+4*p+3}")
        for i in range(8): a(f"v_lshlrev_b32 v{OWN+2*i}, 16, v{XR+i}\nv_and_b32 v{OWN+2*i+1}, 0xffff0000, v{XR+i}")
        self.next_arena()
        a(f"s_mul_i32 {sT[9]}, {sW}, {nks*KB}\ns_add_u32 {sT[9]}, {sT[9]}, {sRD}\ns_add_u32 {sT[9]}, {sT[9]}, {O_H}\ns_lshl_b32 {sT[10]}, {sMH}, 2")
        for s in range(4):
            a(f"s_add_u32 {sT[s]}, {sW}, {s+1}\ns_and_b32 {sT[s]}, {sT[s]}, 3")
            if s < 3: a(f"s_mul_i32 {sT[8]}, {sT[s]}, {PAGE}\ns_add_u32 {sT[8]}, {sT[8]}, {L_Z + s*4*KB}\nv_add_u32 v{vTMP+3+s}, {sT[8]}, {vL16}")
            a(f"s_add_u32 {sT[s]}, {sT[s]}, {sT[10]}\ns_mul_i32 {sT[s]}, {sT[s]}, {HT}\ns_add_u32 {sT[s]}, {sT[s]}, {sT[9]}")
        a(f"s_cmp_eq_u32 {sW}, 3\ns_cselect_b32 {sT[9]}, {KB}, 0")
        a(f"v_bfe_u32 v{LOC}, {vL}, 2, 1\nv_and_b32 v{LOC+1}, 12, {vPB}\nv_lshl_or_b32 v{LOC}, v{LOC}, 6, v{LOC+1}")
        a(f"v_add_u32 v{LOC+1}, {sPAGE}, {vL16}")
        if ph == 8:
            a(f"s_lshl_b32 {sT[5]}, {sMT}, 15\ns_add_u32 {sT[5]}, {sT[5]}, {sROW}\ns_lshl_b32 {sT[6]}, {sNB}, 7\ns_add_u32 {sT[5]}, {sT[5]}, {sT[6]}\ns_add_u32 {sT[6]}, {sT[5]}, {16*KB}")
            W0 = LOC + 2
            a(f"s_add_u32 {sT[7]}, {sW3K}, {L_E}")
            a(f"v_mul_u32_u24 v{W0}, 36, {vPB}\nv_lshrrev_b32 v{W0+1}, 1, {vG16}\nv_add3_u32 v{W0}, v{W0}, v{W0+1}, {sT[7]}")
            a(f"v_lshrrev_b32 v{W0+2}, 3, {vL}\nv_and_b32 v{W0+3}, 0x70, {vL16}")
            a(f"v_mul_u32_u24 v{W0+1}, 144, v{W0+2}\nv_add3_u32 v{W0+1}, v{W0+1}, v{W0+3}, {sT[7]}\nv_lshl_or_b32 v{W0+2}, v{W0+2}, 11, v{W0+3}")
        else:
            a(f"s_lshl_b32 {sT[5]}, {sMT}, 14\ns_lshl_b32 {sT[11]}, {sNB}, 11\ns_add_u32 {sT[5]}, {sT[5]}, {sT[11]}\ns_add_u32 {sT[5]}, {sT[5]}, {sWR}")
            a(f"s_lshl_b32 {sT[6]}, {sMT}, 10\ns_add_u32 {sT[6]}, {sT[6]}, {sSO}\ns_add_u32 {sT[6]}, {sT[6]}, {sWR}\ns_add_u32 {sT[6]}, {sT[6]}, {O_ST}")
            a(f"v_bfe_u32 v{LOC+2}, {vL}, 4, 1\nv_lshrrev_b32 v{LOC+3}, 5, {vL}\nv_lshl_or_b32 v{LOC+2}, v{LOC+2}, 1, v{LOC+3}")
            a(f"v_lshlrev_b32 v{LOC+3}, 2, {vPB}\nv_lshl_or_b32 v{LOC+2}, v{LOC+2}, 8, v{LOC+3}")

    def narrow(self, ps, which):
        a = self.a
        nks = 4 if which == 2 else 11
        wb = 0 if which == 2 else 64
        ph = ps*4 + which
        last = (ph == 8)
        RING = 16
        A0, AC, OWN, PS, LOC = self.N_A0, self.N_AC, self.N_OWN, self.N_PS, self.N_LOC
        self.poll(f"v{LOC}", sPLA, ph - 1)
        self.stamp(f"p{which}.polled")
        N = 4*nks
        def lda(f):
            if f >= N: return
            s, j = divmod(f, nks)
            if j and j % 4 == 0: a(f"s_add_u32 {sT[s]}, {sT[s]}, 4096")
            if j == 10: a(f"s_sub_u32 {sT[s]}, {sT[s]}, {sT[9]}")
            a.vmem(f"buffer_load_dwordx4 {vr(A0 + (f % RING)*4)}, {vL16}, {WS}, {sT[s]} offen offset:{(j%4)*KB} sc1", f"a{f}")
        PD = self.c.NPD
        self.vgap = 4 if ps else 3
        for f in range(PD): lda(f)
        if ps == 0:
            us = range(5, 5 + self.c.hop1_units) if which == 2 else self.tail_units
            for u in us: self.run(self.unit_reads(u, u % 3))
            a.wait(lg="all")
            if which == 4:
                l = a.label("L_z")
                a(f"s_cmp_lg_u32 {sW}, 3\ns_cbranch_scc1 {l}")
                for i in range(16): a(f"v_accvgpr_write_b32 a{14*16+i}, 0")
                a(f"{l}:\ns_nop 1")
        if ph != 8: a("s_barrier")
        for f in range(N):
            s, j = divmod(f, nks)
            a.wait(vm=f"a{f}")
            d0 = OWN if s == 3 else AC + (s % 2)*16
            for t in range(4):
                d = d0 + t*4
                c = "0" if (j == 0 and s < 3) else vr(d)
                a(f"{MF} {vr(d)}, {ar(wb + j*16 + t*4)}, {vr(A0 + (f % RING)*4)}, {c}")
                if t == 0 and f + PD < N: lda(f + PD)
                elif f + PD >= N: self.slot(2)
                else: self.fill(2)
            if j == 0 and s > 0:
                pd = AC + ((s-1) % 2)*16
                for t in range(4):
                    self.F(lambda t=t, pd=pd, s=s: a.lds(f"ds_write_b128 v{vTMP+3+s-1}, {vr(pd + t*4)} offset:{t*KB}", "pw"))
            if s == 3 and j == 1:
                self.flush()
                a.wait(lg="all")
                a("s_barrier")
                for i in range(12):
                    self.F(lambda i=i: a.lds(f"ds_read_b128 {vr(PS + i*4)}, v{LOC+1} offset:{i*KB}", f"pr{i}"))
                if which == 4:
                    self.F(lambda: a.wait(lg="pr7"))
                    for i in range(16): self.F(f"v_add_f32 v{PS+i}, v{PS+i}, v{PS+16+i}")
                    self.F(lambda: a.wait(lg="all"))
                    for i in range(16): self.F(f"v_add_f32 v{PS+i}, v{PS+i}, v{PS+32+i}")
                elif ps == 0: self.V(self.chunk_items("1", 0, RSLOT[0]))
            if which == 2 and ps == 1 and f == 8:
                c0 = self.c.w1_at_A + self.c.w1_drain1
                for c in range(c0, min(8, c0 + self.c.w1_p2)): self.V(self.chunk_items("1", c, c*PAGE))
        self.flush(); self.vflush()
        self.stamp(f"p{which}.main")
        if which == 2:
            a.wait(lg="pr7")
            for i in range(8): a(f"v_pk_add_f32 {vr(PS+2*i, 2)}, {vr(PS+2*i, 2)}, {vr(PS+16+2*i, 2)}")
            a.wait(lg="all")
            for i in range(8): a(f"v_pk_add_f32 {vr(OWN+2*i, 2)}, {vr(OWN+2*i, 2)}, {vr(PS+32+2*i, 2)}")
        for i in range(8): a(f"v_pk_add_f32 {vr(OWN+2*i, 2)}, {vr(OWN+2*i, 2)}, {vr(PS+2*i, 2)}")
        for i in range(8): a(f"v_cvt_pk_bf16_f32 v{XR+i}, v{OWN+2*i}, v{OWN+2*i+1}")
        if last:
            W0 = LOC + 2
            for t in range(4): a.lds(f"ds_write_b64 v{W0}, {vr(XR + 2*t, 2)} offset:{t*32}")
            for i in range(2): a.lds(f"ds_read_b128 {vr(AC + 4*i)}, v{W0+1} offset:{i*8*144}", f"o{i}")
            for i in range(2):
                a.wait(lg=f"o{i}")
                a.vmem(f"buffer_store_dwordx4 {vr(AC + 4*i)}, v{W0+2}, {OUT}, {sT[5+i]} offen")
            return
        S = AC
        for p in range(2):
            a(f"{MF} {vr(S+4)}, {vr(XR+4*p)}, {vr(XR+4*p)}, {'0' if p == 0 else vr(S+4)}")
            a(f"{MF} {vr(S)}, {vr(ONES)}, {vr(XR+4*p)}, {'0' if p == 0 else vr(S)}")
        for p in range(2): a(f"v_permlane16_swap_b32 v{XR+4*p}, v{XR+4*p+2}\nv_permlane16_swap_b32 v{XR+4*p+1}, v{XR+4*p+3}")
        self.store2([f"buffer_store_dwordx4 {vr(XR+4*p)}, v{LOC+2}, {WS}, {sT[5]} offen offset:{p*KB}" for p in range(2)], wt=ph)
        a(f"v_cndmask_b32 v{S+4}, v{S+4}, v{S+5}, {mL1}\nv_cndmask_b32 v{S+6}, v{S+6}, v{S+7}, {mL3}\ns_or_b64 vcc, {mL2}, {mL3}")
        a(f"v_cndmask_b32 v{S+1}, v{S+4}, v{S+6}, vcc")
        a(f"s_mov_b64 exec, {mDG}")
        self.store2([f"buffer_store_dwordx2 {vr(S, 2)}, v{LOC+3}, {WS}, {sT[6]} offen"], wt=ph)
        a("s_mov_b64 exec, -1")
        self.stamp(f"p{which}.stored")
        if which == 2:
            if ps == 0:
                a("s_barrier")
                for c in range(1, 1 + self.c.hop2_chunks): self.run(self.chunk_items("1", c, RSLOT[c]))
            else:
                for c in range(self.c.w1_at_A + self.c.w1_drain1 + self.c.w1_p2, 8): self.run(self.chunk_items("1", c, c*PAGE))
            self.p3_prep(ps)
        else: self.p1_prep()
        self.flag(sFLB, ph)
        self.stamp(f"p{which}.flag")
        if ph == 4:
            l = a.label("L_nhp")
            a(f"s_cmp_lg_u32 {sMT}, 7\ns_cbranch_scc1 {l}")
            for p in range(2): a(f"buffer_store_dwordx4 {vr(XR+4*p)}, v{LOC+2}, {WS}, {sH1} offen offset:{p*KB} sc1")
            a(f"s_mov_b64 exec, {mDG}\nbuffer_store_dwordx2 {vr(S, 2)}, v{LOC+3}, {WS}, {sH2} offen sc1")
            a(f"s_mov_b64 exec, -1\n{l}:\ns_nop 1")

    P3_A0 = VB; P3_ACC = VB + 64; P3_WF = VB + 112; P3_CS = VB + 144; P3_BI = VB + 168; P3_ST = VB + 192

    def p3_prep(self, ps):
        a = self.a
        CS, ST = self.P3_CS, self.P3_ST
        sA0, sA1 = sT[0], sT[1]
        self.next_arena()
        a(f"s_lshl_b32 {sA0}, {sW}, 15\ns_add_u32 {sA0}, {sA0}, {sRD}\ns_add_u32 {sA1}, {sA0}, {16*KB}")
        a(f"s_lshl_b32 {sT[2]}, {sW}, 11\ns_add_u32 {sT[2]}, {sT[2]}, {sRD}\ns_add_u32 {sT[2]}, {sT[2]}, {O_ST}")
        a(f"s_mul_i32 {sT[8]}, {sW}, {2*HT}\ns_lshl_b32 {sT[9]}, {sP0}, 10\ns_add_u32 {sT[8]}, {sT[8]}, {sT[9]}")
        a(f"s_add_u32 {sT[8]}, {sT[8]}, {sWR}\ns_add_u32 {sT[8]}, {sT[8]}, {O_H}\ns_add_u32 {sT[9]}, {sT[8]}, {HT}")
        a(f"v_add_u32 v{vTMP+5}, {L_CS1}, {vG16}")
        a(f"s_and_b32 {sT[4]}, {sC}, 3\ns_cmp_eq_u32 {sT[4]}, 3\ns_cselect_b32 {sT[4]}, 0x40000000, 0\nv_add_u32 v{ST+4}, {sT[4]}, {vL16}")
        a(f"s_cmp_eq_u32 {sC}, 15\ns_cselect_b32 {sT[4]}, 0x40000000, 0\nv_add_u32 v{ST+5}, {sT[4]}, {vL16}")
        if ps == 0:
            self.cs_addr(CS + 12, vR0, 6)
        else:
            for j in range(6): a.lds(f"ds_read_b128 {vr(CS + j*4)}, v{vTMP+5} offset:{j*64}", "cs")

    def p3(self, ps):
        a = self.a
        ph = ps*4 + 3
        A0, ACC, WF, CS, BI, ST = self.P3_A0, self.P3_ACC, self.P3_WF, self.P3_CS, self.P3_BI, self.P3_ST
        STL = BI
        CW = CS; CA = CS + 12
        SA = 208
        areg = lambda ks, T: A0 + ((ks % 8)*2 + T)*4
        acc = lambda j, T: ACC + (j*2 + T)*4
        def blk(ks, p, h, t):
            o = ((ks & 1)*2 + h)*3*KB + p*64
            if ps == 0: return (vR0, vR1)[t], RSLOT[ks // 2] - 96*KB + o
            ad = (ks // 2)*PAGE + o
            return ((vR0, vR1)[t], ad) if ad < 48*KB else ((vZ0, vZ1)[t], ad - 48*KB)
        sA0, sA1 = sT[0], sT[1]
        nh = self.c.hop2_chunks
        lda = self.a_loader(areg, sA0, sA1)
        a("s_barrier")
        if ps == 0:
            a(f"s_lshl_b32 {sT[3]}, {sP0}, 6\nv_lshlrev_b32 v{vTMP+3}, 1, {vL}")
            a.vmem(f"buffer_load_short_d16_hi v{ST}, v{vTMP+3}, {B1}, {sT[3]} offen")
            a.vmem(f"buffer_load_short_d16_hi v{ST+1}, v{vTMP+3}, {B1}, {sT[3]} offen offset:128")
        def between():
            self.poll(vPB, sPLB, ph - 1)
            self.stamp("p3.polled")
            for ks in range(self.c.PD0): self.run(lda[ks])
            if ps == 0:
                a(f"v_and_b32 v{ST}, 0xffff0000, v{ST}\nv_and_b32 v{ST+1}, 0xffff0000, v{ST+1}")
                a(f"v_lshlrev_b32 v{vTMP}, 2, {vL}\nv_add_u32 v{vTMP}, {L_BI}, v{vTMP}")
                a.lds(f"ds_write2_b32 v{vTMP}, v{ST}, v{ST+1} offset0:0 offset1:64")
        sync = list(self.c.p3_sync) if ps == 0 else ([13] if self.c.w1_at_A + self.c.w1_drain1 + self.c.w1_p2 < 8 else [])
        pend = list(range(1 + nh, 8)) if ps == 0 else []
        rest = list(range(5 + self.c.hop1_units, 15))
        r1, r2, self.tail_units = rest[:3], rest[3:6], rest[6:]
        assert len(self.tail_units) <= 3
        free_after = {5: 1, 6: 3, 7: 5}
        state = {"bar": -1}
        def cw_F(c):
            for i in range(3):
                for h in range(2):
                    self.F(lambda i=i, h=h: a.lds(f"ds_read_b64_tr_b16 {vr(CW + i*4 + 2*h, 2)}, v{CA+i} offset:{RSLOT[c] - 96*KB + h*3*KB}", "cw"))
        def pre_k(ks):
            if ks in sync:
                nxt = [s for s in sync if s > ks]
                hi = 7 if not nxt else (nxt[0] + 1)//2 - 1
                assert all(c not in pend for c in range(hi + 1)), (ks, pend)
                while ps == 0 and a.issued.get(f"d{hi}", 0) < 3: self.vq.pop(0)()
                self.stamp(f"s{ks}a")
                a.wait(vm=f"d{hi}")
                self.stamp(f"s{ks}b")
                a("s_barrier")
                self.stamp(f"s{ks}c")
                state["bar"] = ks
            if ks == 10: self.flush()
            self.V(self.a_sched(lda, ks))
            if ks == (8 if ps == 0 else 2):
                for T in range(2):
                    self.V(lambda T=T: a.vmem(f"buffer_load_dwordx4 {vr(STL + T*4)}, {vL16}, {WS}, {sT[2]} offen offset:{T*KB} sc1", f"stl{ph}"))
            if pend and (ks % 2 == 1 or ks == 0) and free_after.get(pend[0], -2) < state["bar"]:
                c = pend.pop(0); self.V(self.chunk_items("1", c, RSLOT[c]))
            if ps == 0:
                if ks == 0: cw_F(0)
                elif ks % 2 == 1 and ks < 15: cw_F((ks + 1)//2)
            if ks == 14: self.flush()
            if ks == (11 if ps == 0 else 6) and not self.c.x_nofill:
                while a.issued.get(f"stl{ph}", 0) < 2: self.vq.pop(0)()
                self.F(lambda: a.wait(vm=f"stl{ph}"))
                for T in range(2):
                    self.F(f"v_add_f32 v{ST+2*T}, v{STL+4*T}, v{STL+4*T+2}\nv_add_f32 v{ST+2*T+1}, v{STL+4*T+1}, v{STL+4*T+3}")
                self.F2(self.stats_text(ST, vTMP), self.stats_text(ST + 2, vTMP + 1))
            if ks == 14:
                for j in range(6): self.F(lambda j=j: a.lds(f"ds_read_b128 {vr(BI + j*4)}, v{vTMP+5} offset:{512 + j*64}", "bi"))
            if ps == 0 and ks == self.c.th_ks and self.c.touch_h:
                self.V(lambda: (a(f"v_lshlrev_b32 v{vTMP+4}, 7, {vL}"), self.ws_touch(f"v{vTMP+4}", False, True)))
            if ks == 14 and ps == 0: self.cs_publish_F(SA, vTMP)
            if ks == 15 and ps == 0:
                self.flush(); a.wait(lg="all")
                a("s_barrier")
                self.cs_combine_F(L_CS1, A0)
                for u in r1[:1]: self.V(self.unit_items(u, u % 3))
        def post_frag(ks, j):
            if ps == 1 and ks in (10, 11, 12, 13) and not self.c.x_nofill:
                jj = (j + 3) % 6; r = ks - 10
                for T in range(2): a(f"v_fmac_f32 v{acc(jj, T) + r}, v{CS + jj*4 + r}, v{ST + 2*T + 1}")
            if ps == 0:
                if j == 5 and (ks == 0 or ks % 2 == 1) and ks != 15: self.flush()
                if ks == 15 and j == 2:
                    self.cs_combine2_F(A0)
                    for jj in range(6): self.F(lambda jj=jj: a.lds(f"ds_read_b128 {vr(CS + jj*4)}, v{vTMP+5} offset:{jj*64}", "cs"))
                if (ks % 2 == 0 and ks < 14 and j == (5 if ks == 0 else 2)) or (ks == 13 and j == 5):
                    a.wait(lg="cw")
                    for i in range(3):
                        a(f"{MF} {ar(SA + i*4)}, {vr(ONES)}, {vr(CW + i*4)}, {'0' if ks == 0 else ar(SA + i*4)}")
                        self.slot(2)
        self.vgap = self.c.vgap if ps else self.c.vgap31
        self.wide(blk, areg, ACC, WF, pre_k, False, post_frag, rate=lambda f: 0 if (ps == 1 and 60 <= f < 84) else 2, between=between)
        a.bg += self.vq; self.vq = []
        self.flush()
        self.stamp("p3.main")
        if ps == 0:
            for u in r1[1:]: a.bg += self.paced(self.unit_items(u, u % 3))
            a.bg_every = self.c.bg3
            a.wait(lg="all")
            for T in range(2):
                for j in range(6):
                    for q in range(2):
                        b = acc(j, T) + 2*q
                        a(f"v_pk_fma_f32 {vr(b, 2)}, {vr(CS + j*4 + 2*q, 2)}, {vr(ST + 2*T, 2)}, {vr(b, 2)} op_sel:[0,1,0] op_sel_hi:[1,1,1]")
        a.wait(lg="bi")
        self.stamp("p3.fix")
        HF = WF
        TT = A0
        for T in range(2):
            st = vr(ST + 2*T, 2)
            regs = []
            for j in range(6):
                for q in range(2):
                    regs.append((acc(j, T) + 2*q, BI + j*4 + 2*q, TT + (j*2 + q)*2, HF + (T*3 + j//2)*4 + (j % 2)*2 + q))
            stages = [
                lambda ac, bi, e, o: [f"v_pk_fma_f32 {vr(ac, 2)}, {vr(ac, 2)}, {st}, {vr(bi, 2)} op_sel_hi:[1,0,1]", f"v_pk_mul_f32 {vr(e, 2)}, {vr(ac, 2)}, {sLG}"],
                lambda ac, bi, e, o: [f"v_exp_f32 v{e}, v{e}", f"v_exp_f32 v{e+1}, v{e+1}"],
                lambda ac, bi, e, o: [f"v_pk_fma_f32 {vr(e+24, 2)}, {vr(e, 2)}, 0.5, 1.0 op_sel_hi:[1,0,0]", f"v_pk_fma_f32 {vr(e, 2)}, {vr(e, 2)}, {vr(e+24, 2)}, 1.0 op_sel_hi:[1,1,0]"],
                lambda ac, bi, e, o: [f"v_rcp_f32 v{e}, v{e}", f"v_rcp_f32 v{e+1}, v{e+1}"],
                lambda ac, bi, e, o: [f"v_pk_fma_f32 {vr(ac, 2)}, {vr(ac, 2)}, {vr(e, 2)}, {vr(ac, 2)} neg_lo:[1,0,0] neg_hi:[1,0,0]", f"v_cvt_pk_bf16_f32 v{o}, v{ac}, v{ac+1}"]]
            for it in range(12 + 4):
                if ps == 0 and T == 1 and it % 4 == 0 and it // 4 < len(r2):
                    k = it // 4
                    a.bg_flush()
                    self.run(self.unit_reads(r1[k], r1[k] % 3))
                    a.bg += self.paced([lambda: a.wait(lg="all")] + self.unit_items(r2[k], r2[k] % 3))
                    a.bg_every = self.c.bg3; a._bgc = 0
                cols = [stages[k](*regs[it - k]) for k in range(5) if 0 <= it - k < 12]
                for half in range(2):
                    for c_ in cols: a(c_[half])
            a.bg_every = 0
            self.stamp(f"p3.T{T}b")
            self.store2([f"buffer_store_dwordx4 {vr(HF + (T*3 + p)*4)}, {('v%d' % (ST+4), 'v%d' % (ST+5), vL16)[p]}, {WS}, {sT[8+T]} offen offset:{p*KB}" for p in range(3)], wt=ph)
        self.stamp("p3.stored")
        a.bg_flush()
        self.narrow_prep(ps, 4)
        if ps == 0:
            for k, u in enumerate(r2):
                self.run(self.unit_reads(u, u % 3))
                if k < len(self.tail_units):
                    a.wait(lg="all"); self.run(self.unit_items(self.tail_units[k], self.tail_units[k] % 3))
        self.flag(sFLA, ph)
        self.stamp("p3.flag")

    def build(self):
        a = self.a
        self.cold = []
        for ps in range(2):
            self.p1(ps)
            self.narrow(ps, 2)
            self.p3(ps)
            self.narrow(ps, 4)
        self.stamp("end")
        if self.c.stamps:
            a(f"s_memrealtime {sSTMP}\ns_waitcnt lgkmcnt(0)\nv_writelane_b32 {vSTAMP}, s86, 63")
            a(f"s_lshl_b32 {sT[0]}, s2, 2\ns_add_u32 {sT[0]}, {sT[0]}, {sW}\ns_lshl_b32 {sT[0]}, {sT[0]}, 8\ns_add_u32 {sT[0]}, {sT[0]}, {O_STAMP}")
            a(f"v_lshlrev_b32 v{vTMP}, 2, {vL}")
            a(f"buffer_store_dword {vSTAMP}, v{vTMP}, {WS}, {sT[0]} offen")
        if self.c.dbgstamps:
            a(f"s_or_b32 {sT[0]}, s2, {sW}\ns_cmp_lg_u32 {sT[0]}, 0\ns_cbranch_scc1 L_end")
            a(f"v_lshlrev_b32 v{vTMP}, 2, {vL}\ns_mov_b64 exec, 0xcccc")
            a(f"buffer_store_dword {vSTAMP}, v{vTMP}, {DBG}, 0 offen sc1")
        a("L_end:\ns_endpgm")
        for ls, le, items in self.cold:
            a(f"{ls}:\ns_nop 7")
            for t in items: a(t + " sc1" if t.startswith("buffer_") else t)
            a(f"s_nop 1\ns_branch {le}")
        a("L_code_end:")
        head = open("cdna_kernels/" + NAME + ".s.ref").read().split("; Override launch")[0]
        head += f"; @launch grid=(256,1,1) block=(256,1,1) lds={LDS_BYTES}\n"
        head += f'.amdgcn_target "amdgcn-amd-amdhsa--gfx950"\n.text\n.globl {NAME}_kernel\n.p2align 8\n.type {NAME}_kernel,@function\n{NAME}_kernel:\n'
        tail = f'''.section .rodata,"a"
.p2align 6
.amdhsa_kernel {NAME}_kernel
  .amdhsa_next_free_vgpr 512
  .amdhsa_next_free_sgpr 100
  .amdhsa_accum_offset 256
  .amdhsa_group_segment_fixed_size 0
  .amdhsa_kernarg_size 80
  .amdhsa_user_sgpr_count 2
  .amdhsa_user_sgpr_kernarg_segment_ptr 1
  .amdhsa_system_sgpr_workgroup_id_x 1
  .amdhsa_float_denorm_mode_32 3
.end_amdhsa_kernel
'''
        return head + a.text() + tail

def make(**kw):
    c = Cfg()
    for k, v in kw.items(): setattr(c, k, v)
    g = Gen(c)
    return g.build(), g

if __name__ == "__main__":
    out = sys.argv[1] if len(sys.argv) > 1 else "cdna_kernels/" + NAME + ".s"
    import ast
    kw = dict(ast.literal_eval(sys.argv[2])) if len(sys.argv) > 2 else {}
    txt, g = make(**kw)
    open(out, "w").write(txt)
    print("instructions:", len(g.a.ins), "padded wait states:", g.a.padded)
```
